```python
import torch

def _softmax(x, axis=-1):
    return torch.softmax(x, dim=axis)
def _gelu(x):
    return torch.nn.functional.gelu(x, approximate="tanh")
def _silu(x):
    return torch.nn.functional.silu(x)
def _sigmoid(x):
    return torch.sigmoid(x)
def _layernorm(x, axis=-1, eps=1e-5):
    m = x.mean(dim=axis, keepdim=True)
    v = x.var(dim=axis, keepdim=True, unbiased=False)
    return (x - m) / torch.sqrt(v + eps)
def _scatter_add(tgt, idx, src, axis=0):
    return tgt.clone().index_add_(axis, idx, src)
def _segment_sum(src, seg, n):
    out = torch.zeros((n,) + src.shape[1:], dtype=src.dtype)
    return out.index_add_(0, seg, src)
def _pad(x, pw):
    flat = tuple(v for pair in reversed(pw) for v in pair)
    return torch.nn.functional.pad(x, flat)

kernel_name = 'recurrent_scan__mha_block__mixer_channel_mlp__prompt'

def setup_inputs():

    _w = (lambda a: (lambda t: t.to(torch.bfloat16) if t.is_floating_point() else t)(torch.as_tensor(a)))
    def _A_setup():
        B, S, D, H = 1, 2048, 512, 32
        return {
            "x": _w((lambda *s: torch.randn(*s, dtype=torch.bfloat16) * 0.05)(B, S, D)),
            "wqkv": _w((lambda *s: torch.randn(*s, dtype=torch.bfloat16) * 0.1)(D, 3 * D)),
            "wo": _w((lambda *s: torch.randn(*s, dtype=torch.bfloat16) * 0.05)(D, D)),
        }
    _A_in = _A_setup()

    def _B_setup():
        B, S, D, F = 1, 2048, 512, 1792
        return {
            "x": _w((lambda *s: torch.randn(*s, dtype=torch.bfloat16) * 0.05)(B, S, D)),
            "w1": _w((lambda *s: torch.randn(*s, dtype=torch.bfloat16) * 3.2)(D, F) * (D ** -0.5)),
            "b1": _w((lambda *s: torch.randn(*s, dtype=torch.bfloat16) * 1.6)(F)),
            "w2": _w((lambda *s: torch.randn(*s, dtype=torch.bfloat16) * 0.8)(F, D) * (F ** -0.5)),
            "b2": _w((lambda *s: torch.randn(*s, dtype=torch.bfloat16) * 0.8)(D)),
        }
    _B_in = _B_setup()

    return {
        "A_x": _A_in["x"],
        "A_wqkv": _A_in["wqkv"],
        "A_wo": _A_in["wo"],
        "B_x": _B_in["x"],
        "B_w1": _B_in["w1"],
        "B_b1": _B_in["b1"],
        "B_w2": _B_in["w2"],
        "B_b2": _B_in["b2"],
    }

def reference(A_x, A_wqkv, A_wo, B_x, B_w1, B_b1, B_w2, B_b2):
    def _A_ref(x, wqkv, wo):
        B, S, D = x.shape
        H = 32
        Dh = D // H
        qkv = (lambda x, *d: x.permute(*d))((x @ wqkv).reshape(B, S, 3, H, Dh), 2, 0, 3, 1, 4)
        q, k, v = qkv[0], qkv[1], qkv[2]
        scores = torch.einsum("bhqd,bhkd->bhqk", q, k) * (Dh ** -0.5)
        p = _softmax(scores, axis=-1)
        o = torch.einsum("bhqk,bhkd->bhqd", p, v)
        return (lambda x, *d: x.permute(*d))(o, 0, 2, 1, 3).reshape(B, S, D) @ wo

    def _B_ref(x, w1, b1, w2, b2):
        y = _layernorm(x, axis=-1)
        h = _gelu(torch.einsum("bsd,df->bsf", y, w1) + b1)
        return torch.einsum("bsf,fd->bsd", h, w2) + b2

    x = A_x
    xn = _layernorm(x, axis=-1)
    s = _A_ref(xn, A_wqkv, A_wo)
    g = _silu(_B_ref(xn, B_w1, B_b1, B_w2, B_b2))
    return x + s * g
```

```python
import sys, subprocess, json

def kernel(name, bodies, iters, vgpr=128, pre=None, agpr=0, rnd=()):
    L = []
    L.append(f".globl {name}")
    L.append(".p2align 8")
    L.append(f".type {name},@function")
    L.append(f"{name}:")
    L.append("  s_load_dwordx2 s[4:5], s[0:1], 0")
    L.append("  v_lshrrev_b32 v1, 6, v0")
    L.append("  s_nop 1")
    L.append("  v_readfirstlane_b32 s6, v1")
    L.append("  s_waitcnt lgkmcnt(0)")
    L.append("  s_mov_b32 s8, s4")
    L.append("  s_mov_b32 s9, s5")
    L.append("  s_mov_b32 s10, 0x100000")
    L.append("  s_mov_b32 s11, 0x00020000")
    for r in range(2, vgpr):
        L.append(f"  v_mov_b32 v{r}, 0x3c003c00" if r % 2 else f"  v_mov_b32 v{r}, 0xbf000000")
    L.append("  s_mov_b32 s40, 0x9E3779B1")
    for (r0, r1, mask, orv) in rnd:
        for r in range(r0, r1):
            L.append(f"  v_add_u32 v{r}, {r*977+13}, v0")
            L.append(f"  v_mul_lo_u32 v{r}, v{r}, s40")
            L.append(f"  v_lshrrev_b32 v3, 13, v{r}")
            L.append(f"  v_xor_b32 v{r}, v3, v{r}")
            L.append(f"  v_mul_lo_u32 v{r}, v{r}, s40")
            L.append(f"  v_and_b32 v{r}, {mask}, v{r}")
            L.append(f"  v_or_b32 v{r}, {orv}, v{r}")
    L.append("  v_lshlrev_b32 v2, 4, v0")
    L.append("  v_and_b32 v2, 0x3ff0, v2")
    if pre:
        L += ["  " + x for x in pre]
    L.append("  s_lshr_b32 s7, s6, 2")
    nb = len(bodies)
    for i in range(1, nb):
        L.append(f"  s_and_b32 s12, s7, {nb-1}" if (nb & (nb-1)) == 0 else f"  s_mov_b32 s12, s7")
        L.append(f"  s_cmp_eq_u32 s12, {i}")
        L.append(f"  s_cbranch_scc1 {name}_b{i}")
    for i, b in enumerate(bodies):
        L.append(f"{name}_b{i}:")
        L.append("  s_barrier")
        L.append("  s_memtime s[14:15]")
        L.append("  s_memrealtime s[42:43]")
        L.append(f"  s_mov_b32 s13, {iters}")
        L.append("  s_waitcnt lgkmcnt(0)")
        L.append(".p2align 6")
        L.append(f"{name}_l{i}:")
        L += ["  " + x for x in b]
        L.append("  s_sub_u32 s13, s13, 1")
        L.append("  s_cmp_lg_u32 s13, 0")
        L.append(f"  s_cbranch_scc1 {name}_l{i}")
        L.append("  s_nop 15")
        L.append("  s_nop 15")
        L.append("  s_waitcnt vmcnt(0) lgkmcnt(0)")
        L.append("  s_memtime s[16:17]")
        L.append("  s_memrealtime s[44:45]")
        L.append("  s_waitcnt lgkmcnt(0)")
        L.append(f"  s_branch {name}_end")
    L.append(f"{name}_end:")
    L.append("  s_sub_u32 s16, s16, s14")
    L.append("  s_lshl_b32 s18, s2, 4")
    L.append("  s_add_u32 s18, s18, s6")
    L.append("  s_lshl_b32 s18, s18, 2")
    L.append("  v_mov_b32 v1, s18")
    L.append("  v_mov_b32 v3, s16")
    L.append("  v_and_b32 v0, 63, v0")
    L.append("  v_cmp_eq_u32 vcc, 0, v0")
    L.append("  s_and_saveexec_b64 s[20:21], vcc")
    L.append("  buffer_store_dword v3, v1, s[8:11], 0 offen")
    L.append("  s_sub_u32 s44, s44, s42")
    L.append("  s_mov_b32 s46, 0x10000")
    L.append("  v_mov_b32 v3, s44")
    L.append("  s_nop 1")
    L.append("  buffer_store_dword v3, v1, s[8:11], s46 offen")
    L.append("  s_waitcnt vmcnt(0)")
    L.append("  s_endpgm")
    D = []
    acc = (vgpr + 3) // 4 * 4
    D.append(".p2align 6")
    D.append(f".amdhsa_kernel {name}")
    D.append(f"  .amdhsa_next_free_vgpr {acc + agpr}")
    D.append("  .amdhsa_next_free_sgpr 64")
    D.append(f"  .amdhsa_accum_offset {acc}")
    D.append("  .amdhsa_group_segment_fixed_size 0")
    D.append("  .amdhsa_kernarg_size 8")
    D.append("  .amdhsa_user_sgpr_count 2")
    D.append("  .amdhsa_user_sgpr_kernarg_segment_ptr 1")
    D.append("  .amdhsa_system_sgpr_workgroup_id_x 1")
    D.append("  .amdhsa_float_denorm_mode_32 3")
    D.append(".end_amdhsa_kernel")
    M = f"""  - .name: {name}
    .symbol: {name}.kd
    .kernarg_segment_size: 8
    .kernarg_segment_align: 8
    .group_segment_fixed_size: 0
    .private_segment_fixed_size: 0
    .wavefront_size: 64
    .sgpr_count: 64
    .vgpr_count: {acc + agpr}
    .max_flat_workgroup_size: 1024
    .args:
      - {{.name: kernargs, .size: 8, .offset: 0, .value_kind: by_value}}
"""
    return "\n".join(L), "\n".join(D), M

def build(tests, out):
    code, desc, meta = [], [], []
    for t in tests:
        c, d, m = kernel(t["name"], t["bodies"], t["iters"], t.get("vgpr", 128), t.get("pre"), t.get("agpr", 0), t.get("rnd", ()))
        code.append(c); desc.append(d); meta.append(m)
    s = '.amdgcn_target "amdgcn-amd-amdhsa--gfx950"\n.text\n' + "\n".join(code) + '\n.section .rodata,"a"\n' + "\n".join(desc)
    s += "\n.amdgpu_metadata\n---\namdhsa.version: [1, 2]\namdhsa.kernels:\n" + "".join(meta) + "...\n.end_amdgpu_metadata\n"
    open(out + ".s", "w").write(s)
    r = subprocess.run(["clang", "-x", "assembler", "-target", "amdgcn-amd-amdhsa", "-mcpu=gfx950", out + ".s", "-o", out + ".co"], capture_output=True, text=True)
    if r.returncode:
        print(r.stderr[:4000]); sys.exit(1)
    json.dump([{k: t.get(k) for k in ("name", "iters", "blocks", "lds", "grids")} for t in tests], open(out + ".json", "w"))
```

```python
from mbgen import build
T = []
def mf(d, a, b, c):
    cs = f"v[{c}:{c+15}]" if isinstance(c, int) else c
    return f"v_mfma_f32_32x32x16_bf16 v[{d}:{d+15}], v[{a}:{a+3}], v[{b}:{b+3}], {cs}"
def seqs(S, P):
    seq = []
    for i in range(16):
        seq.append(f"v_exp_f32 v{S+i}, v{S+i}")
        if i % 2 == 1 and i >= 3:
            j = (i - 3) // 2
            seq.append(f"v_cvt_pk_bf16_f32 v{P+j}, v{S+2*j}, v{S+2*j+1}")
    return seq
def dense(S, P, O, V, Sn, K, Q, pP, pO, pV, pS, slots):
    seq = seqs(S, P)
    return [seq[0], seq[1], f"v_cvt_pk_bf16_f32 v{pP+7}, v{pS+14}, v{pS+15}"] + seq[2:4] + [mf(pO, pV+4, pP+4, pO)] + slots[0] + seq[4:9] + [mf(Sn, K, Q, "0")] + slots[1] + seq[9:16] + [mf(O, V, P, O)] + slots[2] + seq[16:]
def sparse(S, P, Sn, K, Q, pP, pO, pL, pV, pS, slots, lmode):
    seq = seqs(S, P)
    pv = f"v_smfmac_f32_32x32x32_bf16 v[{pO}:{pO+15}], v[{pV}:{pV+3}], v[{pP}:{pP+7}], v170"
    ls = {"s16": [f"v_smfmac_f32_16x16x64_bf16 v[{pL}:{pL+3}], v[172:175], v[{pP}:{pP+7}], v171"], "none": [],
          "s32": [f"v_smfmac_f32_32x32x32_bf16 v[{104}:{119}], v[172:175], v[{pP}:{pP+7}], v171"]}[lmode]
    return [seq[0], seq[1], f"v_cvt_pk_bf16_f32 v{pP+7}, v{pS+14}, v{pS+15}"] + seq[2:4] + [pv] + slots[0] + seq[4:9] + [mf(Sn, K, Q, "0")] + slots[1] + seq[9:16] + ls + slots[2] + seq[16:]
def body(kind, lmode="s16"):
    L = []
    for st in range(8):
        Kc, Kn = (144, 148) if st % 2 == 0 else (148, 144)
        Vc, Vn = (152, 160) if st % 2 == 0 else (160, 152)
        rk = f"ds_read_b128 v[{Kn}:{Kn+3}], v2 offset:{st*1024}"
        if kind == "dense":
            rv1 = f"ds_read_b128 v[{Vn}:{Vn+3}], v5 offset:{(st%4)*1024}"
            rv2 = f"ds_read_b128 v[{Vn+4}:{Vn+7}], v5 offset:{(st%4)*1024+512}"
            L += dense(8, 56, 72, Vc, 24, Kc, 140, 64, 88, Vn, 24, [[rk], [rv1], [rv2]])
            L += dense(24, 64, 88, Vc, 8, Kn, 136, 56, 72, Vc, 8, [["s_waitcnt lgkmcnt(0)"], [], []])
        else:
            rv = f"ds_read_b128 v[{Vn}:{Vn+3}], v2 offset:{8192+st*1024}"
            L += sparse(8, 56, 24, Kc, 140, 64, 88, 124, Vn, 24, [[rk], [rv], []], lmode)
            L += sparse(24, 64, 8, Kn, 136, 56, 72, 120, Vc, 8, [["s_waitcnt lgkmcnt(0)"], [], []], lmode)
    return L
R = (136, 168, "0x80ff80ff", "0x3f003f00")
R2 = (176, 192, "0x80ff80ff", "0x3f003f00")
pre = ["v_and_b32 v3, 63, v0", "v_lshlrev_b32 v2, 4, v3"]
pre += ["v_lshlrev_b32 v4, 4, v0"] + [f"ds_write_b128 v4, v[{176+4*i}:{179+4*i}] offset:{4096*i}" for i in range(4)]
pre += [f"v_mov_b32 v{176+i}, 0x3f803f80" for i in range(4)] + ["ds_write_b128 v4, v[176:179] offset:16384", "s_waitcnt lgkmcnt(0)"]
pre += ["v_and_b32 v4, 15, v3", "v_lshlrev_b32 v4, 4, v4", "v_lshrrev_b32 v5, 5, v3", "v_lshl_add_u32 v5, v5, 8, v4", "v_add_u32 v5, 8192, v5", "v_add_u32 v4, 16384, v4",
        "v_and_b32 v6, 16, v3", "v_cmp_eq_u32 vcc, 0, v6", "s_nop 1", "v_cndmask_b32 v5, v4, v5, vcc",
        "v_mov_b32 v6, 0x44444444", "v_mov_b32 v7, 0xeeeeeeee", "v_cndmask_b32 v170, v7, v6, vcc",
        "v_and_b32 v4, 1, v3", "v_cmp_eq_u32 vcc, 0, v4", "s_nop 1", "v_cndmask_b32 v171, v7, v6, vcc",
        "v_and_b32 v4, 6, v3", "v_mov_b32 v6, 0x3f803f80", "v_cmp_eq_u32 vcc, 0, v4", "s_nop 1", "v_cndmask_b32 v172, 0, v6, vcc", "v_cndmask_b32 v173, 0, v6, vcc",
        "v_cmp_eq_u32 vcc, 4, v4", "s_nop 1", "v_cndmask_b32 v174, 0, v6, vcc", "v_cndmask_b32 v175, 0, v6, vcc"]
pre += [f"v_mov_b32 v{r}, 0" for r in range(72, 128)]
G = [256]
it = 200
for nm, b in (("dense", body("dense")), ("sparse_s16", body("sparse", "s16")), ("sparse_none", body("sparse", "none")), ("sparse_s32", body("sparse", "s32"))):
    T.append(dict(name=nm, bodies=[b], iters=it, blocks=[256], grids=G, vgpr=192, rnd=[R, R2], pre=pre, lds=32768))
    T.append(dict(name=nm + "_short", bodies=[b], iters=8, blocks=[256], grids=G, vgpr=192, rnd=[R, R2], pre=pre, lds=32768))
build(T, "t6")
```

```python
NAME = "recurrent_scan__mha_block__mixer_channel_mlp__prompt"

KA_X, KA_WQKV, KA_WO, KA_BX, KA_W1, KA_B1, KA_W2, KA_B2, KA_OUT, KA_DBG, KA_WS = [8 * i for i in range(11)]
SZ_X, SZ_WQKV, SZ_WO, SZ_W1, SZ_B1, SZ_W2, SZ_B2, SZ_OUT = 2097152, 1572864, 524288, 1835008, 3584, 1835008, 1024, 2097152
WS_Q, WS_K, WS_V = 0x000000, 0x200000, 0x400000
WS_O, WS_G, WS_H = 0x600000, 0x800000, 0xA00000
WS_STAMP = 0x1200000
WS_USED = 0x1400000

class Asm:
    def __init__(self):
        self.L = []
    def __call__(self, *lines):
        for s in lines:
            self.L.append("    " + s)
    def label(self, s):
        self.L.append(s + ":")
    def c(self, s):
        self.L.append("    ; " + s)
    def raw(self, s):
        self.L.append(s)
    def text(self):
        return "\n".join(self.L)

def vr(a, n):
    return f"v[{a}:{a+n-1}]" if n > 1 else f"v{a}"
def sr(a, n):
    return f"s[{a}:{a+n-1}]" if n > 1 else f"s{a}"

def mfma(d, a, b, c=None):
    cs = vr(d, 16) if c is None else (vr(c, 16) if isinstance(c, int) else c)
    return f"v_mfma_f32_32x32x16_bf16 {vr(d,16)}, {vr(a,4)}, {vr(b,4)}, {cs}"

def srd(A, s, ptr, size):
    A(f"s_mov_b32 s{s}, s{ptr}", f"s_and_b32 s{s+1}, s{ptr+1}, 0xffff", f"s_mov_b32 s{s+2}, {size}", f"s_mov_b32 s{s+3}, 0x20000")

def kernel_begin(A, name):
    A.raw(f".globl {name}")
    A.raw(".p2align 8")
    A.raw(f".type {name},@function")
    A.label(name)

def descriptor(name, vgpr, sgpr=102):
    return f""".p2align 6
.amdhsa_kernel {name}
  .amdhsa_next_free_vgpr {vgpr}
  .amdhsa_next_free_sgpr {sgpr}
  .amdhsa_accum_offset {(vgpr + 3) // 4 * 4}
  .amdhsa_group_segment_fixed_size 0
  .amdhsa_kernarg_size 88
  .amdhsa_user_sgpr_count 2
  .amdhsa_user_sgpr_kernarg_segment_ptr 1
  .amdhsa_system_sgpr_workgroup_id_x 1
  .amdhsa_float_denorm_mode_32 3
.end_amdhsa_kernel"""

def f2u(x):
    import struct
    return struct.unpack("<I", struct.pack("<f", x))[0]
def fl(x):
    return hex(f2u(x))

STAMP0 = 64
def stamp(A, idx, on):
    if on:
        A(f"s_memtime s[{STAMP0+2*idx}:{STAMP0+2*idx+1}]")
def stamp_init(A, on):
    if on:
        for i in range(16):
            A(f"s_mov_b32 s{STAMP0+2*i}, 0")
        A(f"s_memrealtime s[{STAMP0+28}:{STAMP0+29}]")
def stamp_store(A, on, kidx, srd_ws, wave="s3", vt=2):
    if not on:
        return
    A(f"s_memtime s[{STAMP0+26}:{STAMP0+27}]", f"s_memrealtime s[{STAMP0+30}:{STAMP0+31}]", "s_waitcnt vmcnt(0) lgkmcnt(0)", "s_mov_b64 exec, 1",
      f"s_lshl_b32 s96, s2, 3", f"s_add_u32 s96, s96, {wave}", "s_lshl_b32 s96, s96, 6",
      f"s_add_u32 s96, s96, {WS_STAMP + kidx*0x20000}", f"v_mov_b32 v{vt+1}, 0")
    for i in range(16):
        A(f"v_mov_b32 v{vt}, s{STAMP0+2*i}", "s_nop 0", f"buffer_store_dword v{vt}, v{vt+1}, s[{srd_ws}:{srd_ws+3}], s96 offen offset:{4*i}", "s_nop 0")
    A("s_waitcnt vmcnt(0)")
```

```python
from common import *
import math

OPT = set()
L_K = 0
L_RING = 8192
L_VTOP = 147456
L_W2A = 65536
L_Q = 147456
ST_X, ST_CS, ST_R = L_Q, L_Q + 2048, L_Q + 4096
L_ONE = 155648
ST_C1 = 159744
LDS_BYTES = 163840
L_WO, L_O = 0, 65536
WS_CNT = 0x1100000
C_QKV, C_H, C_O = 0, 16, 32
SPIN = 200000
SX, SWQ, SW1, SWS, SW2, SWO, SOUT = 8, 12, 16, 20, 24, 28, 32
PB1, PB2, PDBG = 36, 38, 40
sRB, sG, sRBLK, sROLE, sXO, sWQO, sW1O, sM0, sT0, sT1, sT2, sHASF, sIT, sST, sROT, sH, sQB, sMW, sSP, sBAR, sFB, sKV = range(42, 64)
sHO, sPH, sWO = 97, 98, 99
vL, vSO = 1, 2
ACC = [16, 32]
WB = 48
vXR, vWR = 64, 68
vDX, vDW, vD1 = 72, 76, 72
vSX, vCS = 84, 88
vSQ = 82
SEL = 96
EX, EW = 100, 104
vB1, vRS, vGA, vGB, vGS, vC1 = 108, 111, 112, 113, 114, 115
vCUR = 4
T = 116
X = 128
SA, SB_, OA, OB, CA, CB = 16, 32, 64, 80, 96, 112
QA, QB, KB, VB = 128, 132, 136, 144
vKA, vVA, vVI, vIDX, vK0 = 160, 161, 162, 164, 165
TA = 168

class VM:
    def __init__(self, A): self.A, self.ops = A, []
    def op(self, tag, *ins):
        for i in ins:
            self.A(i)
            if i.startswith(("buffer_", "global_")): self.ops.append(tag)
    def n_after(self, tag):
        idx = max(i for i, t in enumerate(self.ops) if t == tag)
        return len(self.ops) - 1 - idx
    def wait(self, tag, extra=""):
        self.A(f"s_waitcnt vmcnt({self.n_after(tag)}){extra}")
    def clone(self):
        v = VM(self.A); v.ops = list(self.ops); return v

def m16(d, a, b, first=False):
    return f"v_mfma_f32_16x16x32_bf16 {vr(d,4)}, {vr(a,4)}, {vr(b,4)}, {'0' if first else vr(d,4)}"
def smf(O, V, S):
    return f"v_smfmac_f32_32x32x32_bf16 {vr(O,16)}, {vr(V,4)}, {vr(S,8)}, v{vIDX}"

def kc_of(A, c):
    A(f"s_add_u32 s{sT1}, s{sROT}, {c}", f"s_and_b32 s{sT1}, s{sT1}, 7")

def dma_p1(c):
    slot = L_RING + (c % 4) * 32768
    it1 = [f"s_add_u32 s{sT1}, s{sROT}, {c}", f"s_and_b32 s{sT1}, s{sT1}, 7", f"s_lshl_b32 s{sT0}, s{sT1}, 7", f"s_mul_i32 s{sT1}, s{sT1}, {64*3072}",
           f"s_add_u32 m0, s{sM0}, {slot}", f"s_add_u32 s{sT0}, s{sXO}, s{sT0}"]
    it1 += [f"buffer_load_dwordx4 v{vDX+p}, {sr(SX,4)}, s{sT0} offen offset:{p*1024} lds" for p in range(4)]
    it2 = [f"s_add_u32 m0, s{sMW}, {slot+16384}", f"s_add_u32 s{sT0}, s{sWQO}, s{sT1}"]
    it2 += [f"buffer_load_dwordx4 v{vDW+p}, {sr(SWQ,4)}, s{sT0} offen offset:{p*1024} lds" for p in range(3)]
    return [(f"p{c}", it1), (f"p{c}", it2)]

def dma_w1(q):
    return [(f"w{q}", [f"s_add_u32 s{sT1}, s{sROT}, {2*q+hh}", f"s_and_b32 s{sT1}, s{sT1}, 7", f"s_mul_i32 s{sT1}, s{sT1}, {64*3584}",
              f"s_add_u32 m0, s{sM0}, {L_RING + q*32768 + hh*16384}", f"s_add_u32 s{sT0}, s{sW1O}, s{sT1}"] +
             [f"buffer_load_dwordx4 v{vD1+p}, {sr(SW1,4)}, s{sT0} offen offset:{p*1024} lds" for p in range(4)]) for hh in range(2)]

def wbuf(s, role):
    return ([48, 56, 8] if role == 0 else [48, 52, 56])[s % 3]

def p1_reads(A, s, role):
    c, i = divmod(s, 4)
    off = L_RING + (c % 2) * 32768
    wb = wbuf(s, role)
    A(f"ds_read_b128 {vr(X+4*s,4)}, v{vXR+i} offset:{off}")
    for b in range(2 if role == 0 else 1):
        for u in range(2):
            A(f"ds_read_b64_tr_b16 {vr(wb+4*b+2*u,2)}, v{vWR+i} offset:{off+16384+u*768+b*64}")

def p1_loop(A, vm, orient, role, diag):
    nb = 2 if role == 0 else 1
    pend = dma_p1(2) + dma_p1(3) if role == 1 else []
    for s in range(32):
        c, i = divmod(s, 4)
        wb = wbuf(s, role)
        if i == 2:
            while pend:
                t_, ins = pend.pop(0); vm.op(t_, *ins)
            if c == 2: stamp(A, 8, diag)
            if c < 7 and role == 1: vm.wait(f"p{c+1}")
            if c == 2: stamp(A, 9, diag)
            A("s_barrier")
            if c == 2: stamp(A, 10, diag)
            if role == 1 and 1 <= c <= 4: pend = dma_p1(c + 3)
            if role == 0 and c >= 5: pend = dma_w1(c - 5)
        if s + 2 < 32:
            if (s + 2) % 8 in (0, 1, 2, 3) and s + 2 >= 8:
                j = (s + 2) % 4
                A(f"v_xor_b32 v{vXR+j}, 0x10000, v{vXR+j}", f"v_xor_b32 v{vWR+j}, 0x10000, v{vWR+j}")
            p1_reads(A, s + 2, role)
        A(f"s_waitcnt lgkmcnt({(1+2*nb) * min(2, 31-s)})")
        for b in range(nb):
            a, bb = (wb + 4*b, X + 4*s) if orient == "T" else (X + 4*s, wb + 4*b)
            A(mfma(ACC[b], a, bb, "0" if s == 0 else None))
        if role == 1:
            A(m16(vSX, SEL, X + 4*s, s == 0))
        if i == 3:
            for b in range(nb):
                A(m16(vCS + 4*b, SEL, wb + 4*b, c == 0))
        if pend:
            t_, ins = pend.pop(0); vm.op(t_, *ins)
            if s == 0:
                t_, ins = pend.pop(0); vm.op(t_, *ins)
        if i == 3 and role == 1:
            for r in range(16):
                A(f"v_dot2_f32_bf16 v{vSQ+(r&1)}, v{X+16*c+r}, v{X+16*c+r}, v{vSQ+(r&1)}")
    assert not pend

def hilo(A, dst, src, t):
    A(f"v_cvt_pk_bf16_f32 v{t}, v{src}, v{src}", f"v_and_b32 v{t}, 0xffff0000, v{t}", f"v_sub_f32 v{t+1}, v{src}, v{t}",
      f"v_cvt_pk_bf16_f32 v{dst}, v{t}, v{t+1}")
def ew_from_cs(A, cs, t):
    A(f"v_cvt_pk_bf16_f32 v{EW}, v{cs}, v{cs}", f"v_and_b32 v{t}, 0xffff0000, v{EW}", f"v_sub_f32 v{t}, v{cs}, v{t}",
      f"v_cvt_pk_bf16_f32 v{EW+1}, v{t}, v{t}")

_lbl = [0]
def poll(A, name, voff, vt, target, lanes):
    _lbl[0] += 1; n = _lbl[0]
    A(f"s_mov_b32 s{sSP}, {SPIN}", f"s_mov_b64 exec, {(1 << lanes) - 1}")
    A.label(f"{name}_pl{n}")
    A(f"buffer_load_dword v{vt}, v{voff}, {sr(SWS,4)}, 0 offen sc1", "s_waitcnt vmcnt(0)", f"v_cmp_ne_u32 vcc, {target}, v{vt}",
      f"s_cbranch_vccz {name}_pd{n}", "s_sleep 3", f"s_sub_u32 s{sSP}, s{sSP}, 1", f"s_cbranch_scc0 {name}_pl{n}")
    A.label(f"{name}_pd{n}")
    A("s_mov_b64 exec, -1")

def cleared(A, name):
    _lbl[0] += 1; n = _lbl[0]
    A("s_cmp_lg_u32 s3, 4", f"s_cbranch_scc1 {name}_zd{n}", f"s_mov_b32 s{sSP}, {SPIN}")
    A.label(f"{name}_zp{n}")
    A(f"v_readfirstlane_b32 s{sT0}, v3", f"s_cmp_lg_u32 s{sT0}, 0", f"s_cbranch_scc1 {name}_zd{n}", "s_sleep 3",
      f"global_load_dword v3, v110, s[{PDBG}:{PDBG+1}] sc1", "s_waitcnt vmcnt(0)", f"s_sub_u32 s{sSP}, s{sSP}, 1", f"s_cbranch_scc0 {name}_zp{n}")
    A.label(f"{name}_zd{n}")

def signal(A, sidx, vt):
    A(f"s_lshl_b32 s{sT0}, s{sidx}, 7", f"s_add_u32 s{sT0}, s{sT0}, {WS_CNT}", f"v_mov_b32 v{vt}, 1", f"v_mov_b32 v{vt+1}, 0", "s_mov_b64 exec, 1",
      f"buffer_atomic_add v{vt}, v{vt+1}, {sr(SWS,4)}, s{sT0} offen sc1", "s_mov_b64 exec, -1")

def tile(A, S, O, V, Sn, K, Q, C, pO, pV, slots):
    e = [f"v_exp_f32 v{S+i}, v{S+i}" for i in range(16)]
    A(*e[:5]); A(smf(pO, pV+4, Sn+8), *slots[0])
    A(*e[5:7]); A(mfma(Sn, K, Q, C), *slots[1])
    A(*e[7:10]); A(smf(O, V, S), *slots[2])
    A(*e[10:])

def attn_loop(A, name, fast):
    ca, cb = ("0", "0") if fast else (CA, CB)
    A(f"ds_read_b128 {vr(KB,4)}, v{vKA}", f"ds_read_b128 {vr(VB,4)}, v{vVA} offset:3072", f"ds_read_b128 {vr(VB+4,4)}, v{vVA} offset:3584",
      "s_waitcnt lgkmcnt(0)", mfma(SA, KB, QA, ca), f"s_mov_b32 s{sIT}, 0", "s_nop 7", "s_nop 2")
    A.raw(".p2align 6")
    A.label(name)
    for st in range(8):
        Kc, Kn = (KB, KB+4) if st % 2 == 0 else (KB+4, KB)
        Vc, Vn = (VB, VB+8) if st % 2 == 0 else (VB+8, VB)
        rk = f"ds_read_b128 {vr(Kn,4)}, v{vKA} offset:{(st+1)*1024}"
        vo = (3 - (st + 1) % 4) * 1024
        rv1 = f"ds_read_b128 {vr(Vn,4)}, v{vVA} offset:{vo}"
        rv2 = f"ds_read_b128 {vr(Vn+4,4)}, v{vVA} offset:{vo+512}"
        if st == 7 and fast:
            A(f"s_cmp_lt_u32 s{sIT}, 2", f"s_cbranch_scc0 {name}_nb", "s_waitcnt vmcnt(0)", "s_barrier")
            A.label(f"{name}_nb")
        if st % 4 == 3:
            A(f"v_sub_u32 v{vVA}, v{vVA}, v{vVI}")
        last = [f"s_add_u32 s{sIT}, s{sIT}, 1"] if st == 7 else []
        cmp_ = [f"s_cmp_lt_u32 s{sIT}, 8"] if st == 7 else []
        tile(A, SA, OA, Vc, SB_, Kc, QB, cb, OB, Vn, [[rk], ["s_waitcnt lgkmcnt(1)"], [rv1]])
        tile(A, SB_, OB, Vc, SA, Kn, QA, ca, OA, Vc, [["s_waitcnt lgkmcnt(1)", rv2], last, cmp_])
    A(f"v_add_u32 v{vKA}, 8192, v{vKA}", f"s_cbranch_scc1 {name}")
    A("s_nop 1", smf(OB, VB+8+4, SB_+8), "s_waitcnt lgkmcnt(0)", "s_nop 7", "s_nop 7")

def attn_init(A):
    t = TA
    A(f"v_and_b32 v{t}, 15, v{vL}", f"v_lshlrev_b32 v{t}, 4, v{t}", f"v_lshrrev_b32 v{t+1}, 5, v{vL}", f"v_lshl_add_u32 v{t+1}, v{t+1}, 8, v{t}",
      f"v_add_u32 v{t+1}, {L_VTOP-4096}, v{t+1}", f"v_add_u32 v{t}, {L_ONE}, v{t}", f"v_and_b32 v{t+2}, 16, v{vL}", f"v_cmp_eq_u32 vcc, 0, v{t+2}",
      f"v_mov_b32 v{t+2}, 4096", f"v_mov_b32 v{vKA}, v{vK0}", f"v_cndmask_b32 v{vVA}, v{t}, v{t+1}, vcc", f"v_cndmask_b32 v{vVI}, 0, v{t+2}, vcc")
    for r in list(range(OA, OA+32)) + list(range(SB_+8, SB_+16)) + [VB+12, VB+13, VB+14, VB+15]:
        A(f"v_mov_b32 v{r}, 0")

def tr128_addr(A, dst, t, s_nb, base):
    A(f"v_bfe_u32 v{t}, v{vL}, 2, 2", f"v_lshrrev_b32 v{t+1}, 5, v{vL}", f"v_lshl_add_u32 v{t+1}, v{t+1}, 2, v{t}", f"v_lshlrev_b32 v{t+1}, 7, v{t+1}",
      f"v_lshrrev_b32 v{t}, 1, v{t}", f"v_xor_b32 v{t}, s{s_nb}, v{t}", f"v_lshl_add_u32 v{t+1}, v{t}, 6, v{t+1}",
      f"v_bfe_u32 v{t}, v{vL}, 4, 1", f"v_lshl_add_u32 v{t+1}, v{t}, 5, v{t+1}",
      f"v_and_b32 v{t}, 1, v{vL}", f"v_lshl_add_u32 v{t+1}, v{t}, 4, v{t+1}", f"v_bfe_u32 v{t}, v{vL}, 1, 1", f"v_lshl_add_u32 v{t+1}, v{t}, 3, v{t+1}",
      f"v_add_u32 v{dst}, {base}, v{t+1}")

def dma128_off(A, dst, t):
    A(f"v_lshrrev_b32 v{t}, 3, v{vL}", f"v_lshlrev_b32 v{t}, 10, v{t}", f"v_bfe_u32 v{t+1}, v{vL}, 4, 1", f"v_lshlrev_b32 v{t+1}, 2, v{t+1}",
      f"v_and_b32 v{t+2}, 7, v{vL}", f"v_xor_b32 v{t+1}, v{t+1}, v{t+2}", f"v_lshl_add_u32 v{dst}, v{t+1}, 4, v{t}", f"v_add_u32 v{dst+1}, {8192-1024}, v{dst}")

def p3_common_dma_wo(A, vDW3):
    A(f"s_lshl_b32 s{sT1}, s3, 16", f"s_lshl_b32 s{sT0}, s{sQB}, 7", f"s_add_u32 s{sT1}, s{sT1}, s{sT0}", f"s_lshl_b32 s{sT2}, s3, 13")
    for j in range(4):
        A(f"s_add_u32 m0, s{sT2}, {L_WO + j*2048}", f"s_add_u32 s{sT0}, s{sT1}, {j*16384}",
          f"buffer_load_dwordx4 v{vDW3}, {sr(SWO,4)}, s{sT0} offen lds", f"buffer_load_dwordx4 v{vDW3+1}, {sr(SWO,4)}, s{sT0} offen offset:1024 lds")

def p3_common_dma_o(A):
    A(f"s_lshl_b32 s{sT1}, s{sH}, 16", f"s_lshl_b32 s{sT2}, s3, 10", f"s_add_u32 s{sT1}, s{sT1}, s{sT2}", f"s_add_u32 s{sT1}, s{sT1}, {WS_O}")
    for c in range(4):
        for tb in range(2):
            A(f"s_add_u32 m0, s{sT2}, {L_O + tb*32768 + c*8192}", f"s_add_u32 s{sT0}, s{sT1}, {tb*32768 + c*8192}",
              f"buffer_load_dwordx4 v{vSO}, {sr(SWS,4)}, s{sT0} offen sc1 lds")

def gen(name, diag=False):
    A = Asm()
    kernel_begin(A, name)
    A("s_cmp_ge_u32 s2, 256", f"s_cbranch_scc1 {name}_end")
    stamp_init(A, diag); stamp(A, 0, diag)
    A(f"s_load_dwordx4 s[4:7], s[0:1], {KA_X}")
    for q, ka in ((SW1, KA_W1), (SWS, KA_WS), (PB1, KA_B1), (SW2, KA_W2), (PB2, KA_B2), (SWO, KA_WO), (SOUT, KA_OUT), (PDBG, KA_DBG)):
        A(f"s_load_dwordx2 s[{q}:{q+1}], s[0:1], {ka}")
    A("v_lshrrev_b32 v2, 6, v0", f"v_and_b32 v{vL}, 63, v0", "v_readfirstlane_b32 s3, v2")
    A.c("work decode (id&7 only steers L2 locality)")
    A(f"s_and_b32 s{sROT}, s2, 7", f"s_lshr_b32 s{sT1}, s2, 3", f"s_lshr_b32 s{sT2}, s{sT1}, 3", f"s_and_b32 s{sQB}, s{sT1}, 7",
      f"s_and_b32 s{sRB}, s{sROT}, 1", f"s_lshl_b32 s{sRB}, s{sRB}, 3", f"s_add_u32 s{sRB}, s{sRB}, s{sQB}",
      f"s_lshr_b32 s{sG}, s{sROT}, 1", f"s_lshl_b32 s{sG}, s{sG}, 2", f"s_add_u32 s{sG}, s{sG}, s{sT2}",
      f"s_lshl_b32 s{sH}, s{sROT}, 2", f"s_add_u32 s{sH}, s{sH}, s{sT2}",
      f"s_lshr_b32 s{sROT}, s{sROT}, 1", f"s_add_u32 s{sROT}, s{sROT}, s{sQB}", f"s_lshl_b32 s{sT2}, s{sT2}, 1",
      f"s_add_u32 s{sROT}, s{sROT}, s{sT2}" if "norot" not in OPT else f"s_mov_b32 s{sROT}, 0",
      f"s_and_b32 s{sRBLK}, s3, 3", f"s_lshr_b32 s{sROLE}, s3, 2", f"s_lshl_b32 s{sM0}, s{sRBLK}, 12",
      f"s_mov_b32 s{SX+2}, {SZ_X}", f"s_mov_b32 s{SX+3}, 0x20000", f"s_mov_b32 s{SWQ+2}, {SZ_WQKV}", f"s_mov_b32 s{SWQ+3}, 0x20000",
      f"s_cmp_eq_u32 s{sROLE}, 0", f"s_cbranch_scc1 {name}_pro0")
    t = T
    vms = [VM(A), VM(A)]
    A.c("role 1: DMA lane offsets.  x: row = 32 rblk + 8p + (l>>3), piece (l&7) ^ ((row>>1)&7)")
    A(f"s_lshl_b32 s{sXO}, s{sRB}, 2", f"s_add_u32 s{sXO}, s{sXO}, s{sRBLK}", f"s_lshl_b32 s{sXO}, s{sXO}, 15",
      f"s_mul_i32 s{sWQO}, s{sG}, 192", f"s_mul_i32 s{sMW}, s{sRBLK}, 192",
      f"v_lshrrev_b32 v{t}, 3, v{vL}", f"v_lshlrev_b32 v{t}, 10, v{t}",
      f"v_lshrrev_b32 v{t+1}, 4, v{vL}", f"v_and_b32 v{t+2}, 7, v{vL}", f"v_xor_b32 v{t+2}, v{t+1}, v{t+2}",
      f"v_lshl_add_u32 v{vDX}, v{t+2}, 4, v{t}", f"v_xor_b32 v{vDX+1}, 64, v{vDX}", f"v_add_u32 v{vDX+1}, {8192-1024}, v{vDX+1}",
      f"v_add_u32 v{vDX+2}, {16384-2048}, v{vDX}", f"v_add_u32 v{vDX+3}, {16384-2048}, v{vDX+1}")
    A.c("Wqkv chunk = 64 rows x 192 B, linear: piece q = 192 rblk + 64 p + lane, row = q / 12")
    for p in range(3):
        A(f"v_add_u32 v{t}, s{sMW}, v{vL}" if p == 0 else f"v_add_u32 v{t}, 64, v{t}", f"v_mul_u32_u24 v{t+2}, 43691, v{t}",
          f"v_lshrrev_b32 v{t+2}, 19, v{t+2}", f"v_mul_u32_u24 v{t+2}, {3072-192}, v{t+2}", f"v_lshl_add_u32 v{vDW+p}, v{t}, 4, v{t+2}")
        if p: A(f"v_subrev_u32 v{vDW+p}, {1024*p}, v{vDW+p}")
    A(f"s_lshl_b32 s{sMW}, s{sMW}, 4", "s_waitcnt lgkmcnt(0)",
      f"s_mov_b32 s{SX}, s4", f"s_and_b32 s{SX+1}, s5, 0xffff", f"s_mov_b32 s{SWQ}, s6", f"s_and_b32 s{SWQ+1}, s7, 0xffff")
    for c in range(2):
        for t_, ins in dma_p1(c): vms[1].op(t_, *ins)
    A(f"s_branch {name}_pro")
    A.label(f"{name}_pro0")
    A("s_waitcnt lgkmcnt(0)", f"s_mov_b32 s{SX}, s4", f"s_and_b32 s{SX+1}, s5, 0xffff", f"s_mov_b32 s{SWQ}, s6", f"s_and_b32 s{SWQ+1}, s7, 0xffff")
    A(f"v_lshrrev_b32 v{t+1}, 4, v{vL}", f"s_lshl_b32 s{sT0}, s{sRBLK}, 4", f"v_add_u32 v{t}, s{sT0}, v{t+1}", f"v_lshlrev_b32 v{t+2}, 2, v{t+1}",
      f"v_and_b32 v{t+3}, 15, v{vL}", f"v_xor_b32 v{t+2}, v{t+2}, v{t+3}", f"v_lshlrev_b32 v{t+2}, 4, v{t+2}",
      f"v_mul_u32_u24 v{vD1}, 3584, v{t}", f"v_add_u32 v{vD1}, v{vD1}, v{t+2}")
    for p in range(1, 4): A(f"v_add_u32 v{vD1+p}, {p*(4*3584-1024)}, v{vD1}", f"v_mov_b32 v{vDW+p-1}, 0")
    A.label(f"{name}_pro")
    stamp(A, 1, diag)
    t = T + 8
    for q, sz in ((SWS, WS_USED), (SW1, SZ_W1), (SW2, SZ_W2), (SWO, SZ_WO), (SOUT, SZ_OUT)):
        A(f"s_and_b32 s{q+1}, s{q+1}, 0xffff", f"s_mov_b32 s{q+2}, {sz}", f"s_mov_b32 s{q+3}, 0x20000")
    A(f"v_lshlrev_b32 v{vSO}, 4, v{vL}", f"s_min_u32 s{sW1O}, s{sG}, 13", f"s_lshl_b32 s{sW1O}, s{sW1O}, 8")
    A.c("groups 14, 15 have no FFN1 tile: their W1 loads read zeros through an empty descriptor")
    A(f"s_cmp_lt_u32 s{sG}, 14", f"s_cselect_b32 s{SW1+2}, {SZ_W1}, 0", f"s_cselect_b32 s{sHASF}, 1, 0")
    A.c("workgroup 0 clears the hand-off counters and then says so in d_debug (zero at every launch)")
    A(f"s_or_b32 s{sT0}, s2, s3", f"s_cmp_lg_u32 s{sT0}, 0", f"s_cbranch_scc1 {name}_noz",
      f"v_lshlrev_b32 v{t}, 7, v{vL}", f"v_mov_b32 v{t+1}, 0", f"s_mov_b32 s{sT0}, {WS_CNT}",
      f"buffer_store_dword v{t+1}, v{t}, {sr(SWS,4)}, s{sT0} offen sc1", "s_waitcnt vmcnt(0)",
      f"v_mov_b32 v{t}, 1", "s_mov_b64 exec, 1", f"global_store_dword v{t+1}, v{t}, s[{PDBG}:{PDBG+1}] sc1", "s_mov_b64 exec, -1", "s_waitcnt vmcnt(0)")
    A.label(f"{name}_noz")
    A.c("LDS fragment addresses; the k-steps of a chunk are visited in the order i ^ rblk")
    A(f"v_and_b32 v{t}, 31, v{vL}", f"v_lshrrev_b32 v{t+1}, 5, v{vL}", f"v_bfe_u32 v{t+2}, v{vL}, 1, 3", f"v_xor_b32 v{t+2}, v{t+1}, v{t+2}",
      f"s_lshl_b32 s{sT0}, s{sRBLK}, 1", f"v_xor_b32 v{t+2}, s{sT0}, v{t+2}", f"v_lshlrev_b32 v{t+2}, 4, v{t+2}",
      f"s_lshl_b32 s{sT0}, s{sRBLK}, 5", f"v_add_u32 v{t+3}, s{sT0}, v{t}", f"v_lshl_add_u32 v{vXR}, v{t+3}, 7, v{t+2}")
    for i in range(1, 4):
        A(f"v_xor_b32 v{vXR+i}, {i*32}, v{vXR}")
    A(f"v_bfe_u32 v{t+2}, v{vL}, 2, 2", f"v_lshl_add_u32 v{t+3}, v{t+1}, 3, v{t+2}", f"v_mul_u32_u24 v{t+3}, 192, v{t+3}",
      f"v_bfe_u32 v{t+2}, v{vL}, 4, 1", f"v_lshl_add_u32 v{t+3}, v{t+2}, 5, v{t+3}", f"v_and_b32 v{t+2}, 3, v{vL}", f"v_lshl_add_u32 v{t+3}, v{t+2}, 3, v{t+3}")
    for i in range(4):
        A(f"s_xor_b32 s{sT0}, s{sRBLK}, {i}", f"s_mul_i32 s{sT0}, s{sT0}, 3072", f"s_lshl_b32 s{sT1}, s{sROLE}, 7", f"s_add_u32 s{sT0}, s{sT0}, s{sT1}",
          f"v_add_u32 v{vWR+i}, s{sT0}, v{t+3}")
    A(f"v_lshrrev_b32 v{t}, 2, v{vL}", f"v_lshrrev_b32 v{t+1}, 4, v{vL}", f"v_xor_b32 v{t}, v{t}, v{t+1}", f"v_and_b32 v{t}, 1, v{t}",
      f"v_and_b32 v{t+1}, 3, v{vL}", f"v_or_b32 v{t}, v{t}, v{t+1}", f"v_cmp_eq_u32 vcc, 0, v{t}", f"v_mov_b32 v{t+1}, 0x3f803f80",
      f"v_mov_b32 v{vSQ}, 0", f"v_mov_b32 v{vSQ+1}, 0")
    for r in range(4): A(f"v_cndmask_b32 v{SEL+r}, 0, v{t+1}, vcc")
    A.c("rows of the V operand beyond the 16 head dims: ones in rows 16 and 20 (row sums), zero elsewhere")
    A(f"v_and_b32 v{t}, 11, v0", f"v_cmp_eq_u32 vcc, 0, v{t}", f"v_lshlrev_b32 v{t}, 3, v0", f"v_add_u32 v{t}, {L_ONE}, v{t}")
    A(f"v_lshrrev_b32 v{t+2}, 1, v0", f"v_and_b32 v{t+2}, 11, v{t+2}", f"v_cmp_eq_u32 vcc, 0, v{t+2}", "s_nop 1",
      f"v_cndmask_b32 v{t+2}, 0, v{t+1}, vcc", f"v_cndmask_b32 v{t+3}, 0, v{t+1}, vcc", f"ds_write_b64 v{t}, {vr(t+2,2)}")
    A(f"s_cmp_eq_u32 s{sROLE}, 1", f"s_cbranch_scc1 {name}_r1")
    for role in range(2):
        vm = vms[role]
        if role: A.label(f"{name}_r1")
        if role: vm.wait("p0")
        A("s_barrier")
        stamp(A, 2, diag)
        p1_reads(A, 0, role); p1_reads(A, 1, role)
        A(f"s_cmp_ge_u32 s{sG}, {11 if role == 0 else 10}", f"s_cbranch_scc1 {name}_p1n{role}")
        v2 = vm.clone()
        p1_loop(A, vm, "T", role, diag); A(f"s_branch {name}_p1done")
        A.label(f"{name}_p1n{role}")
        p1_loop(A, v2, "N", role, diag)
        if role == 0: A(f"s_branch {name}_p1done")
    A.label(f"{name}_p1done")
    t = T
    stamp(A, 3, diag)
    A.c("exchange partial statistics through LDS")
    A(f"v_and_b32 v{t}, 31, v{vL}", f"v_lshrrev_b32 v{t+1}, 5, v{vL}",
      f"s_lshl_b32 s{sT0}, s{sRBLK}, 9", f"s_add_u32 s{sT0}, s{sT0}, {ST_X}", f"v_lshl_add_u32 v{t+2}, v{t}, 4, s{sT0}",
      f"s_lshl_b32 s{sT0}, s{sROLE}, 10", f"s_add_u32 s{sT0}, s{sT0}, {ST_CS}", f"v_lshl_add_u32 v{t+4}, v{t}, 4, s{sT0}",
      f"s_lshl_b32 s{sT0}, s{sRBLK}, 2", f"v_add_u32 v{t+5}, s{sT0}, v{t+4}", f"v_add_f32 v{vSQ}, v{vSQ}, v{vSQ+1}",
      f"v_lshl_add_u32 v{t+3}, v{t+1}, 2, v{t+2}",
      f"ds_write_b32 v{t+5}, v{vCS}",
      f"s_cmp_eq_u32 s{sROLE}, 1", f"s_cbranch_scc1 {name}_sx1", f"ds_write_b32 v{t+5}, v{vCS+4} offset:512", f"s_branch {name}_sx2")
    A.label(f"{name}_sx1")
    A(f"ds_write_b32 v{t+2}, v{vSX}", f"ds_write_b32 v{t+3}, v{vSQ} offset:4")
    A.label(f"{name}_sx2")
    A("v_mov_b32 v110, 0", "s_waitcnt lgkmcnt(0)", "s_barrier", f"global_load_dword v3, v110, s[{PDBG}:{PDBG+1}] sc1")
    A(f"s_cmp_eq_u32 s{sROLE}, 1", f"s_cbranch_scc1 {name}_now3")
    for t_, ins in dma_w1(3): A(*ins)
    A.label(f"{name}_now3")
    A(f"v_and_b32 v{t+1}, 31, v{vL}", f"s_lshl_b32 s{sT0}, s{sROLE}, 7", f"s_add_u32 s{sT0}, s{sT0}, s{sW1O}", f"v_lshl_add_u32 v{t+1}, v{t+1}, 1, s{sT0}",
      f"global_load_ushort v{vB1}, v{t+1}, s[{PB1}:{PB1+1}]", f"global_load_ushort v{vB1+1}, v{t+1}, s[{PB1}:{PB1+1}] offset:64")
    A(f"ds_read_b128 {vr(8,4)}, v{t+2}", f"ds_read_b128 {vr(WB,4)}, v{t+4}", f"ds_read_b128 {vr(WB+4,4)}, v{t+4} offset:512", "s_waitcnt lgkmcnt(2)")
    eps = 1e-5
    A.c("mean, variance, rstd; the second LayerNorm in closed form: LN(LN(x)) = (x-mean)/sqrt(var + eps*(var+eps))")
    A(f"v_add_f32 v10, v9, v10", f"v_mul_f32 v8, {fl(-1.0/512)}, v8", f"v_mul_f32 v10, {fl(1.0/512)}, v10",
      f"v_fma_f32 v10, -v8, v8, v10", f"v_max_f32 v10, 0, v10",
      f"v_add_f32 v9, {fl(eps)}, v10", f"v_rsq_f32 v{vRS}, v9",
      f"v_fmamk_f32 v9, v9, {fl(eps)}, v10", f"v_rsq_f32 v11, v9", "s_nop 0", f"v_mul_f32 v{vGS}, v9, v11")
    k = 2.0 * math.sqrt(2.0 / math.pi) * math.log2(math.e)
    A(f"v_mul_f32 v{vGA}, {fl(-k)}, v11", f"v_mul_f32 v12, v11, v11", f"v_mul_f32 v12, {fl(0.044715)}, v12", f"v_mul_f32 v{vGB}, v{vGA}, v12")
    hilo(A, EX, 8, 12); hilo(A, EX+2, vGS, 12)
    A(f"v_cmp_gt_u32 vcc, 32, v{vL}", f"v_mov_b32 v{EX+3}, 0", f"v_mov_b32 v{EW+3}, 0",
      f"v_cndmask_b32 v{EX}, 0, v{EX}, vcc", f"v_cndmask_b32 v{EX+2}, 0, v{EX+2}, vcc", f"v_mov_b32 v{EW+2}, 0", f"v_mov_b32 v{EX+1}, v{EX}")
    A.c("QKV epilogue: rank-1 mean correction as one extra MFMA step, scale by rstd, store fragments (block nb -> nb*128 KB)")
    A("s_waitcnt lgkmcnt(0)")
    for b in range(2):
        w = WB + 4*b
        A(f"v_add_f32 v{w}, v{w}, v{w+1}", f"v_add_f32 v{w+2}, v{w+2}, v{w+3}", f"v_add_f32 v{w}, v{w}, v{w+2}")
    A(f"s_mul_i32 s{sT2}, s{sG}, 3", f"s_lshl_b32 s{sT0}, s{sROLE}, 1", f"s_add_u32 s{sT2}, s{sT2}, s{sT0}",
      f"s_lshl_b32 s{sST}, s{sT2}, 17", f"s_lshl_b32 s{sT0}, s{sRB}, 2", f"s_add_u32 s{sT0}, s{sT0}, s{sRBLK}", f"s_lshl_b32 s{sT0}, s{sT0}, 10",
      f"s_add_u32 s{sST}, s{sST}, s{sT0}", f"s_cmp_ge_u32 s{sT2}, 32", f"s_cbranch_scc1 {name}_epiv")
    for b in range(2):
        if b: A(f"s_cmp_eq_u32 s{sROLE}, 1", f"s_cbranch_scc1 {name}_epidone")
        ew_from_cs(A, WB + 4*b, t)
        A(f"s_cmp_lt_u32 s{sT2}, {16-b}", f"s_cselect_b32 s{sT0}, {fl(0.25*math.log2(math.e))}, 1.0", mfma(ACC[b], EW, EX),
          f"v_mul_f32 v{t+1}, s{sT0}, v{vRS}", "s_nop 7", "s_nop 2")
        for p in range(8):
            A(f"v_pk_mul_f32 {vr(ACC[b]+2*p,2)}, {vr(ACC[b]+2*p,2)}, {vr(t,2)} op_sel:[0,1] op_sel_hi:[1,1]")
        for p in range(8):
            A(f"v_cvt_pk_bf16_f32 v{ACC[b]+p}, v{ACC[b]+2*p}, v{ACC[b]+2*p+1}")
        for m in range(2):
            A(f"s_add_u32 s{sT0}, s{sST}, {(2*b+m)*65536}", f"buffer_store_dwordx4 {vr(ACC[b]+4*m,4)}, v{vSO}, {sr(SWS,4)}, s{sT0} offen sc1")
    A(f"s_branch {name}_epidone")
    A.label(f"{name}_epiv")
    A(f"v_and_b32 v{t}, 31, v{vL}", f"s_lshl_b32 s{sT0}, s3, 7", f"s_add_u32 s{sT0}, s{sT0}, {ST_R}",
      f"v_lshl_add_u32 v{t+1}, v{t}, 2, s{sT0}", f"ds_write_b32 v{t+1}, v{vRS}",
      f"v_lshrrev_b32 v{t+1}, 5, v{vL}", f"v_lshl_add_u32 v{t+2}, v{t+1}, 4, s{sT0}",
      f"v_lshrrev_b32 v{t+3}, 4, v{t}", f"v_lshlrev_b32 v{t+3}, 16, v{t+3}", f"v_lshl_add_u32 v{t+3}, v{t+1}, 8, v{t+3}",
      f"v_and_b32 v{t}, 15, v{t}", f"v_lshl_add_u32 v{t+3}, v{t}, 4, v{t+3}", "s_waitcnt lgkmcnt(0)")
    RR = 64
    for a in range(4):
        A(f"ds_read_b128 {vr(RR+4*a,4)}, v{t+2} offset:{a*32}")
    for b in range(2):
        if b: A(f"s_cmp_eq_u32 s{sROLE}, 1", f"s_cbranch_scc1 {name}_epidone")
        ew_from_cs(A, WB + 4*b, t)
        A("s_nop 1", mfma(ACC[b], EX, EW), "s_nop 7", "s_nop 3", "s_waitcnt lgkmcnt(0)")
        for p in range(8):
            A(f"v_pk_mul_f32 {vr(ACC[b]+2*p,2)}, {vr(ACC[b]+2*p,2)}, {vr(RR+2*p,2)}")
        for p in range(8):
            A(f"v_cvt_pk_bf16_f32 v{ACC[b]+p}, v{ACC[b]+2*p}, v{ACC[b]+2*p+1}")
        for m in range(2):
            A(f"s_add_u32 s{sT0}, s{sST}, {2*b*65536 + m*512}", f"buffer_store_dwordx4 {vr(ACC[b]+4*m,4)}, v{t+3}, {sr(SWS,4)}, s{sT0} offen sc1")
    A.label(f"{name}_epidone")
    stamp(A, 4, diag)
    A(f"s_cmp_eq_u32 s{sHASF}, 0", f"s_cbranch_scc1 {name}_nof")
    A.c("FFN1: x stays in registers, the W1 tile is resident in LDS")
    A(f"v_lshrrev_b32 v{t+1}, 5, v{vL}", f"v_bfe_u32 v{t+2}, v{vL}, 2, 2", f"v_lshl_add_u32 v{t+3}, v{t+1}, 3, v{t+2}", f"v_lshlrev_b32 v{t+3}, 8, v{t+3}",
      f"s_lshl_b32 s{sT0}, s{sROLE}, 1", f"v_xor_b32 v{t+2}, s{sT0}, v{t+2}", f"v_lshl_add_u32 v{t+3}, v{t+2}, 6, v{t+3}",
      f"v_bfe_u32 v{t+2}, v{vL}, 4, 1", f"v_lshl_add_u32 v{t+3}, v{t+2}, 5, v{t+3}",
      f"v_and_b32 v{t+2}, 3, v{vL}", f"v_lshl_add_u32 v{t+3}, v{t+2}, 3, v{t+3}",
      f"s_lshl_b32 s{sT0}, s{sRBLK}, 12", f"v_add_u32 v{vCUR}, s{sT0}, v{t+3}")
    for i in range(1, 4): A(f"v_xor_b32 v{vCUR+i}, {i*4096}, v{vCUR}")
    A(f"s_lshl_b32 s{sT0}, s{sRB}, 2", f"s_add_u32 s{sT0}, s{sT0}, s{sRBLK}", f"s_mul_i32 s{sST}, s{sT0}, {112*1024}",
      f"s_lshl_b32 s{sT0}, s{sW1O}, 5", f"s_add_u32 s{sST}, s{sST}, s{sT0}", f"s_lshl_b32 s{sT0}, s{sROLE}, 12", f"s_add_u32 s{sST}, s{sST}, s{sT0}",
      f"s_add_u32 s{sST}, s{sST}, {WS_H}", f"s_mov_b32 s{sIT}, 0",
      f"v_and_b32 v{t}, 31, v{vL}", f"s_lshl_b32 s{sT0}, s{sROLE}, 8", f"s_add_u32 s{sT0}, s{sT0}, {ST_C1}", f"v_lshl_add_u32 v{vC1}, v{t}, 2, s{sT0}")
    def tr_reads(addr, s, sub=False):
        c, i = divmod(s, 4)
        if s == 16:
            for r in range(4): A(f"v_xor_b32 v{addr+r}, 0x10000, v{addr+r}")
        off = L_RING + ((c >> 1) & 1) * 32768 + (c & 1) * 16384
        for u in range(2):
            A(f"ds_read_b64_tr_b16 {vr(WB+4*(s%4)+2*u,2)}, v{addr+i} offset:{off+u*1024}")
    A(f"s_cmp_eq_u32 s{sROLE}, 0", f"s_cbranch_scc1 {name}_f0")
    A("s_waitcnt vmcnt(2)", "s_barrier")
    stamp(A, 5, diag)
    A.c("role 1 first sums the columns of the W1 tile (block rblk per wave)")
    A(f"s_xor_b32 s{sT0}, s{sRBLK}, 2", f"s_lshl_b32 s{sT0}, s{sT0}, 6")
    for i in range(4): A(f"v_xor_b32 v{8+i}, s{sT0}, v{vCUR+i}")
    for s in range(3): tr_reads(8, s)
    for s in range(32):
        if s + 3 < 32: tr_reads(8, s + 3)
        A(f"s_waitcnt lgkmcnt({2*min(3, 31-s)})", m16(vCS, SEL, WB+4*(s%4), s == 0))
    A(f"v_and_b32 v{t}, 31, v{vL}", f"s_lshl_b32 s{sT0}, s{sRBLK}, 7", f"s_add_u32 s{sT0}, s{sT0}, {ST_C1}", f"v_lshl_add_u32 v{t}, v{t}, 2, s{sT0}",
      "s_nop 4", f"ds_write_b32 v{t}, v{vCS}")
    cleared(A, name)
    A("s_waitcnt vmcnt(0) lgkmcnt(0)", "s_barrier", "s_setprio 1", "s_cmp_lg_u32 s3, 4", f"s_cbranch_scc1 {name}_chain")
    signal(A, sG, t)
    A(f"s_branch {name}_chain")
    A.label(f"{name}_f0")
    A("s_waitcnt vmcnt(4)", "s_barrier", "s_setprio 2")
    stamp(A, 5, diag)
    A.label(f"{name}_chain")
    for s in range(3): tr_reads(vCUR, s)
    for s in range(32):
        if s + 3 < 32: tr_reads(vCUR, s + 3)
        A(f"s_waitcnt lgkmcnt({2*min(3, 31-s)})", mfma(ACC[0], WB+4*(s%4), X+4*s, "0" if s == 0 else None))
    A(f"s_lshl_b32 s{sT0}, s{sROLE}, 1", f"s_or_b32 s{sT0}, s{sT0}, s{sIT}", f"s_cmp_eq_u32 s{sT0}, 3", f"s_cbranch_scc1 {name}_kv0",
      f"s_cmp_lg_u32 s{sT0}, 0", f"s_cbranch_scc1 {name}_fepi", "s_setprio 0", "s_waitcnt vmcnt(0)", "s_barrier", f"s_branch {name}_fepi")
    A.label(f"{name}_nof")
    A("s_waitcnt vmcnt(0)")
    cleared(A, name)
    A("s_barrier", f"s_cmp_eq_u32 s{sROLE}, 0", f"s_cbranch_scc1 {name}_attn", "s_cmp_lg_u32 s3, 4", f"s_cbranch_scc1 {name}_kv0")
    signal(A, sG, t)
    A.label(f"{name}_kv0")
    A.c("GEMM waves: wait for this head's Q, K, V (three column groups, 16 row blocks each), then fetch Q and the first 8 key steps")
    A(f"s_lshr_b32 s{sT0}, s{sH}, 1", f"v_lshlrev_b32 v{t}, 4, v{vL}", f"v_add_u32 v{t}, s{sT0}, v{t}", f"v_mul_u32_u24 v{t}, 21846, v{t}",
      f"v_lshrrev_b32 v{t}, 16, v{t}", f"v_lshlrev_b32 v{t}, 7, v{t}", f"v_add_u32 v{t}, {WS_CNT + C_QKV*128}, v{t}")
    poll(A, name, t, t+1, 16, 3)
    stamp(A, 6, diag)
    A(f"s_lshl_b32 s{sKV}, s{sH}, 16", f"s_lshl_b32 s{sMW}, s{sRBLK}, 10", f"s_add_u32 s{sKV}, s{sKV}, s{sMW}")
    def kv(j):
        A(f"s_add_u32 m0, s{sMW}, {L_K + j*4096}", f"s_add_u32 s{sT0}, s{sKV}, {WS_K + j*4096}", f"buffer_load_dwordx4 v{vSO}, {sr(SWS,4)}, s{sT0} offen sc1 lds",
          f"s_sub_u32 m0, {L_VTOP - 1024 - j*4096}, s{sMW}", f"s_add_u32 s{sT0}, s{sKV}, {WS_V + j*4096}", f"buffer_load_dwordx4 v{vSO}, {sr(SWS,4)}, s{sT0} offen sc1 lds")
    kv(0)
    A(f"s_lshl_b32 s{sT0}, s{sQB}, 13", f"s_add_u32 s{sT0}, s{sT0}, s{sKV}", f"s_add_u32 s{sT0}, s{sT0}, s{sMW}", f"s_lshl_b32 s{sT1}, s{sMW}, 1",
      f"s_add_u32 m0, s{sT1}, {L_Q}", "s_nop 0",
      f"buffer_load_dwordx4 v{vSO}, {sr(SWS,4)}, s{sT0} offen sc1 lds", f"buffer_load_dwordx4 v{vSO}, {sr(SWS,4)}, s{sT0} offen offset:1024 sc1 lds")
    kv(1)
    A(f"s_cmp_eq_u32 s{sHASF}, 0", f"s_cbranch_scc1 {name}_g0")
    A.label(f"{name}_fepi")
    A(f"ds_read_b32 v{t}, v{vC1}", f"v_lshl_or_b32 v{EW+2}, v{vB1}, 16, v{vB1}", "s_waitcnt lgkmcnt(0)")
    ew_from_cs(A, t, t+1)
    A("s_nop 1", mfma(ACC[0], EW, EX))
    for i in range(4): A(f"v_xor_b32 v{vCUR+i}, {0x10000 + 64}, v{vCUR+i}")
    A(f"v_mov_b32 v{vB1}, v{vB1+1}", f"v_add_u32 v{vC1}, 128, v{vC1}", "s_nop 5")
    A.c("gelu(u) = u*sigmoid(2*sqrt(2/pi)*(u+0.044715u^3)), u = acc*r12:  h = acc / (sigma'*(1+exp2(acc*(GA+GB*acc^2))))")
    a, G = ACC[0], ACC[1]
    for p in range(16): A(f"v_mul_f32 v{G+p}, v{a+p}, v{a+p}")
    for p in range(16): A(f"v_fma_f32 v{G+p}, v{G+p}, v{vGB}, v{vGA}")
    for p in range(16): A(f"v_mul_f32 v{G+p}, v{G+p}, v{a+p}")
    for p in range(16): A(f"v_exp_f32 v{G+p}, v{G+p}")
    for p in range(16): A(f"v_fma_f32 v{G+p}, v{G+p}, v{vGS}, v{vGS}")
    for p in range(16): A(f"v_rcp_f32 v{G+p}, v{G+p}")
    for p in range(16): A(f"v_mul_f32 v{G+p}, v{G+p}, v{a+p}")
    for p in range(8): A(f"v_cvt_pk_bf16_f32 v{8+p}, v{G+2*p}, v{G+2*p+1}")
    A(f"buffer_store_dwordx4 {vr(8,4)}, v{vSO}, {sr(SWS,4)}, s{sST} offen sc1", f"buffer_store_dwordx4 {vr(12,4)}, v{vSO}, {sr(SWS,4)}, s{sST} offen offset:1024 sc1",
      f"s_add_u32 s{sST}, s{sST}, 2048", f"s_add_u32 s{sIT}, s{sIT}, 1", f"s_cmp_lt_u32 s{sIT}, 2", f"s_cbranch_scc1 {name}_chain")
    A(f"s_cmp_eq_u32 s{sROLE}, 1", f"s_cbranch_scc1 {name}_g1")
    A.label(f"{name}_attn")
    stamp(A, 6, diag)
    t = TA
    A(f"v_mov_b32 v{vIDX}, 0xdddddddd")
    A.c("score row r holds key r with bits 2 and 3 swapped, which lines the probabilities up with the stored V fragments")
    A(f"v_and_b32 v{vK0}, 0x33, v{vL}", f"v_and_b32 v{t}, 4, v{vL}", f"v_lshl_or_b32 v{vK0}, v{t}, 1, v{vK0}", f"v_and_b32 v{t}, 8, v{vL}",
      f"v_lshrrev_b32 v{t}, 1, v{t}", f"v_or_b32 v{vK0}, v{t}, v{vK0}", f"v_lshlrev_b32 v{vK0}, 4, v{vK0}",
      f"s_lshl_b32 s{sT0}, s3, 11", f"s_add_u32 s{sT0}, s{sT0}, {L_Q}", f"v_add_u32 v{t+4}, s{sT0}, v{vSO}")
    attn_init(A)
    A("s_barrier")
    stamp(A, 7, diag)
    A(f"ds_read_b128 {vr(QA,4)}, v{t+4}", f"ds_read_b128 {vr(QB,4)}, v{t+4} offset:1024")
    attn_loop(A, f"{name}_loop", True)
    stamp(A, 11, diag)
    A.c("softmax guard: the unshifted sums are exact while the row sum stays in [2^-80, 2^80] and O is finite; otherwise redo with the true row max")
    A(f"v_mov_b32 v{t}, 0")
    for O in (OA, OB):
        for r in range(8):
            A(f"v_fma_f32 v{t}, v{O+r}, 0, v{t}")
    A(f"v_min_f32 v{t+1}, v{OA+8}, v{OB+8}", f"v_max_f32 v{t+2}, v{OA+8}, v{OB+8}",
      f"v_add_f32 v{t+1}, v{t+1}, v{t}", f"v_add_f32 v{t+2}, v{t+2}, v{t}",
      f"v_cmp_u_f32 s[4:5], v{OA+8}, v{OB+8}",
      f"v_cmp_nle_f32 vcc, {fl(2.0**-80)}, v{t+1}", f"s_or_b64 s[4:5], s[4:5], vcc",
      f"v_cmp_nge_f32 vcc, {fl(2.0**80)}, v{t+2}", f"s_or_b64 s[4:5], s[4:5], vcc",
      f"s_cmp_lg_u64 s[4:5], 0", f"s_cbranch_scc1 {name}_slow")
    A.label(f"{name}_norm")
    A(f"v_rcp_f32 v{t}, v{OA+8}", f"v_rcp_f32 v{t+1}, v{OB+8}",
      f"s_lshl_b32 s{sT2}, s{sQB}, 2", f"s_add_u32 s{sT2}, s{sT2}, s3", f"s_lshl_b32 s{sT0}, s{sT2}, 6",
      f"s_add_u32 s{sT0}, s{sT0}, s{sH}", f"s_lshl_b32 s{sT0}, s{sT0}, 10", f"s_add_u32 s{sT0}, s{sT0}, {WS_O}", f"s_add_u32 s{sT1}, s{sT0}, 32768")
    for j, O in enumerate((OA, OB)):
        for r in range(8):
            A(f"v_mul_f32 v{O+r}, v{O+r}, v{t+j}")
        for p in range(4):
            A(f"v_cvt_pk_bf16_f32 v{O+p}, v{O+2*p}, v{O+2*p+1}")
        A(f"buffer_store_dwordx4 {vr(O,4)}, v{vSO}, {sr(SWS,4)}, s{sT0 if j == 0 else sT1} offen sc1")
    vDW3 = 4
    dma128_off(A, vDW3, t)
    A(f"s_add_u32 s{sT2}, s{sT2}, {C_O}", "s_waitcnt vmcnt(0)")
    signal(A, sT2, t)
    A("s_barrier")
    stamp(A, 12, diag)
    p3_common_dma_wo(A, vDW3)
    A("s_barrier")
    A("s_cmp_lg_u32 s3, 0", f"s_cbranch_scc1 {name}_a6", f"s_add_u32 s{sT0}, s{sH}, {C_O}", f"s_lshl_b32 s{sT0}, s{sT0}, 7", f"s_add_u32 s{sT0}, s{sT0}, {WS_CNT}",
      f"v_mov_b32 v{t}, s{sT0}")
    poll(A, name, t, t+1, 32, 1)
    A.label(f"{name}_a6")
    A("s_barrier")
    p3_common_dma_o(A)
    for c in range(4):
        A(f"s_waitcnt vmcnt({(3-c)*2})", "s_barrier")
    A(f"s_branch {name}_fin")
    A.label(f"{name}_slow")
    A.c("fallback: true maximum of every row, then the same loop with the maximum subtracted through the MFMA C operand")
    A(f"s_mov_b32 s{sIT}, 0", f"v_mov_b32 v{vKA}, v{vK0}", f"v_mov_b32 v{t+4}, 0xff800000", f"v_mov_b32 v{t+5}, 0xff800000")
    A.label(f"{name}_mx")
    A(f"ds_read_b128 {vr(KB,4)}, v{vKA}", "s_waitcnt lgkmcnt(0)", mfma(SA, KB, QA, "0"), mfma(SB_, KB, QB, "0"), "s_nop 7", "s_nop 3")
    for j, S in enumerate((SA, SB_)):
        for r in range(8):
            A(f"v_max3_f32 v{t+4+j}, v{S+2*r}, v{S+2*r+1}, v{t+4+j}")
    A(f"v_add_u32 v{vKA}, 1024, v{vKA}", f"s_add_u32 s{sIT}, s{sIT}, 1", f"s_cmp_lt_u32 s{sIT}, 64", f"s_cbranch_scc1 {name}_mx")
    A(f"v_mov_b32 v{t+6}, v{t+4}", f"v_mov_b32 v{t+7}, v{t+5}", "s_nop 1", f"v_permlane32_swap_b32 v{t+4}, v{t+6}", f"v_permlane32_swap_b32 v{t+5}, v{t+7}", "s_nop 1",
      f"v_max_f32 v{t+4}, v{t+4}, v{t+6}", f"v_max_f32 v{t+5}, v{t+5}, v{t+7}")
    for r in range(16):
        A(f"v_sub_f32 v{CA+r}, 0, v{t+4}", f"v_sub_f32 v{CB+r}, 0, v{t+5}")
    attn_init(A)
    attn_loop(A, f"{name}_loop2", False)
    A(f"s_branch {name}_norm")
    GA, HB, WF = 16, 80, 104
    vDW2, vTR, vB2, XR, vXO = 120, 122, 128, 136, 126
    t = 144
    A.label(f"{name}_g0")
    A("s_waitcnt vmcnt(0)", f"s_branch {name}_g2")
    A.label(f"{name}_g1")
    A("s_waitcnt vmcnt(2)")
    A.label(f"{name}_g2")
    A("s_setprio 0", "s_barrier")
    stamp(A, 7, diag)
    for j in range(2, 16): kv(j)
    dma128_off(A, vDW2, t)
    A(f"s_lshr_b32 s{sT2}, s{sRBLK}, 1", f"s_lshl_b32 s{sM0}, s{sRBLK}, 12")
    tr128_addr(A, vTR, t, sT2, f"s{sM0}")
    A(f"v_add_u32 v{vTR}, {L_W2A}, v{vTR}", f"v_xor_b32 v{vTR+1}, 64, v{vTR}", f"s_lshl_b32 s{sMW}, s{sRBLK}, 11",
      f"s_sub_u32 s{sT0}, {L_Q - L_W2A}, s{sMW}", f"v_add_u32 v{vTR+2}, s{sT0}, v{vTR}", f"v_xor_b32 v{vTR+3}, 64, v{vTR+2}")
    A(f"s_lshl_b32 s{sHO}, s{sH}, 1", f"s_and_b32 s{sT0}, s{sRBLK}, 1", f"s_add_u32 s{sT1}, s{sHO}, s{sT0}", f"s_xor_b32 s{sPH}, s{sT1}, 1",
      f"s_mul_i32 s{sHO}, s{sT1}, {112*1024}", f"s_mul_i32 s{sPH}, s{sPH}, {112*1024}", f"s_mul_i32 s{sT0}, s{sRBLK}, {28*1024}", f"s_add_u32 s{sT0}, s{sT0}, {WS_H}",
      f"s_add_u32 s{sHO}, s{sHO}, s{sT0}", f"s_add_u32 s{sPH}, s{sPH}, s{sT0}",
      f"s_mul_i32 s{sWO}, s{sRBLK}, {28*16384}", f"s_lshl_b32 s{sT0}, s{sQB}, 7", f"s_add_u32 s{sWO}, s{sWO}, s{sT0}")
    A("s_waitcnt vmcnt(24)", "s_barrier")
    A(f"s_cmp_lg_u32 s3, 4", f"s_cbranch_scc1 {name}_g3", f"s_cmp_eq_u32 s{sHASF}, 0", f"s_cbranch_scc1 {name}_g3", f"s_add_u32 s{sT2}, s{sRB}, {C_H}")
    signal(A, sT2, t)
    A.label(f"{name}_g3")
    A("s_waitcnt vmcnt(0)", "s_barrier")
    A(f"s_lshr_b32 s{sT0}, s{sH}, 1", f"s_add_u32 s{sT0}, s{sT0}, {C_H}", f"s_lshl_b32 s{sT0}, s{sT0}, 7", f"s_add_u32 s{sT0}, s{sT0}, {WS_CNT}", f"v_mov_b32 v{t}, s{sT0}")
    poll(A, name, t, t+1, 14, 1)
    stamp(A, 8, diag)
    vm = VM(A)
    def ld(i):
        hb = HB + (i % 3) * 8
        m0 = f"s_add_u32 m0, s{sM0}, {L_W2A + (i%3)*2048}" if i % 3 < 2 else f"s_add_u32 m0, s{sMW}, {L_Q}"
        vm.op(i, m0, f"s_add_u32 s{sT0}, s{sWO}, {i*16384}",
              f"buffer_load_dwordx4 v{vDW2}, {sr(SW2,4)}, s{sT0} offen lds", f"buffer_load_dwordx4 v{vDW2+1}, {sr(SW2,4)}, s{sT0} offen offset:1024 lds",
              f"s_add_u32 s{sT0}, s{sHO}, {i*1024}", f"buffer_load_dwordx4 {vr(hb,4)}, v{vSO}, {sr(SWS,4)}, s{sT0} offen sc1",
              f"s_add_u32 s{sT0}, s{sPH}, {i*1024}", f"buffer_load_dwordx4 {vr(hb+4,4)}, v{vSO}, {sr(SWS,4)}, s{sT0} offen sc1")
    def trw(i):
        for nb in range(2):
            for u in range(2):
                reg, off = (vTR+nb, (i%3)*2048) if i % 3 < 2 else (vTR+2+nb, 0)
                A(f"ds_read_b64_tr_b16 {vr(WF+8*(i%2)+4*nb+2*u,2)}, v{reg} offset:{off + u*1024}")
    ld(0); ld(1); ld(2)
    vm.wait(0); trw(0)
    for i in range(28):
        hb = HB + (i % 3) * 8
        if i + 1 < 28:
            vm.wait(i + 1); trw(i + 1); A("s_waitcnt lgkmcnt(4)")
        else:
            A("s_waitcnt lgkmcnt(0)")
        for a in range(4):
            A(mfma(GA+16*a, WF+8*(i%2)+4*(a>>1), hb+4*(a&1), "0" if i == 0 else None))
        if i + 3 < 28: ld(i + 3)
    stamp(A, 9, diag)
    A.c("bias, residual rows of the own 32x32 sub-tile (nb = w>>1, tb = w&1)")
    A(f"s_lshl_b32 s{sT0}, s{sQB}, 7", f"s_lshr_b32 s{sT2}, s{sRBLK}, 1", f"s_lshl_b32 s{sT1}, s{sT2}, 6", f"s_add_u32 s{sT0}, s{sT0}, s{sT1}",
      f"v_lshrrev_b32 v{t+1}, 5, v{vL}", f"v_lshlrev_b32 v{t+1}, 4, v{t+1}", f"v_add_u32 v{t}, s{sT0}, v{t+1}",
      f"global_load_dwordx4 {vr(vB2,4)}, v{t}, s[{PB2}:{PB2+1}]", f"global_load_dwordx4 {vr(vB2+4,4)}, v{t}, s[{PB2}:{PB2+1}] offset:32",
      f"v_and_b32 v{t}, 31, v{vL}", f"v_lshl_add_u32 v{vXO}, v{t}, 10, v{t+1}",
      f"s_lshl_b32 s{sST}, s{sH}, 1", f"s_and_b32 s{sT1}, s{sRBLK}, 1", f"s_add_u32 s{sST}, s{sST}, s{sT1}", f"s_lshl_b32 s{sST}, s{sST}, 15", f"s_add_u32 s{sST}, s{sST}, s{sT0}",
      f"buffer_load_dwordx4 {vr(XR,4)}, v{vXO}, {sr(SX,4)}, s{sST} offen", f"buffer_load_dwordx4 {vr(XR+4,4)}, v{vXO}, {sr(SX,4)}, s{sST} offen offset:32")
    A.c("touch the Wo slice so that it is near when it is needed")
    A(f"s_lshl_b32 s{sT0}, s{sRBLK}, 17", f"s_lshl_b32 s{sT1}, s{sQB}, 7", f"s_add_u32 s{sT0}, s{sT0}, s{sT1}", f"v_lshlrev_b32 v{t}, 10, v{vL}",
      f"buffer_load_dword v{t+2}, v{t}, {sr(SWO,4)}, s{sT0} offen", f"s_add_u32 s{sT0}, s{sT0}, 65536", f"buffer_load_dword v{t+3}, v{t}, {sr(SWO,4)}, s{sT0} offen")
    tr128_addr(A, vTR, t+4, sT2, L_WO)
    A(f"s_mul_i32 s{sT0}, s{sRBLK}, 12288", f"s_add_u32 s{sT0}, s{sT0}, {L_O}", f"v_add_u32 v{vTR+2}, s{sT0}, v{vSO}",
      f"s_and_b32 s{sT0}, s{sRBLK}, 1", f"s_lshl_b32 s{sT0}, s{sT0}, 15", f"s_add_u32 s{sT0}, s{sT0}, {L_O}", f"v_add_u32 v{vTR+1}, s{sT0}, v{vSO}",
      "s_waitcnt vmcnt(0)", "s_barrier")
    stamp(A, 12, diag)
    p3_common_dma_wo(A, vDW2)
    A.c("reduce the four K-quarters of FFN2: slot r goes to wave w^r")
    for r in range(1, 4):
        for q in range(4):
            A(f"ds_write_b128 v{vTR+2}, {vr(GA+16*r+4*q,4)} offset:{(r-1)*4096 + q*1024}")
    A("s_waitcnt lgkmcnt(0)", "s_barrier")
    for r in range(1, 4):
        A(f"s_xor_b32 s{sT0}, s{sRBLK}, {r}", f"s_mul_i32 s{sT0}, s{sT0}, 12288", f"s_add_u32 s{sT0}, s{sT0}, {L_O + (r-1)*4096}", f"v_add_u32 v{t}, s{sT0}, v{vSO}")
        for q in range(4):
            A(f"ds_read_b128 {vr(GA+16*r+4*q,4)}, v{t} offset:{q*1024}")
    E = 80
    for p in range(8):
        A(f"v_lshlrev_b32 v{E+2*p}, 16, v{vB2+p}", f"v_and_b32 v{E+2*p+1}, 0xffff0000, v{vB2+p}")
    for p in range(8): A(f"v_pk_add_f32 {vr(GA+2*p,2)}, {vr(GA+2*p,2)}, {vr(E+2*p,2)}")
    A("s_waitcnt lgkmcnt(0)", "s_barrier")
    p3_common_dma_o(A)
    for r in range(1, 4):
        for p in range(8): A(f"v_pk_add_f32 {vr(GA+2*p,2)}, {vr(GA+2*p,2)}, {vr(GA+16*r+2*p,2)}")
    A.c("g = silu(v)")
    for p in range(16): A(f"v_mul_f32 v{E+p}, {fl(-math.log2(math.e))}, v{GA+p}")
    for p in range(16): A(f"v_exp_f32 v{E+p}, v{E+p}")
    for p in range(16): A(f"v_add_f32 v{E+p}, 1.0, v{E+p}")
    for p in range(16): A(f"v_rcp_f32 v{E+p}, v{E+p}")
    for p in range(8): A(f"v_pk_mul_f32 {vr(GA+2*p,2)}, {vr(GA+2*p,2)}, {vr(E+2*p,2)}")
    for p in range(8):
        A(f"v_lshlrev_b32 v{E+2*p}, 16, v{XR+p}", f"v_and_b32 v{E+2*p+1}, 0xffff0000, v{XR+p}")
    AC3, WF3, OF3 = 32, 48, 64
    def reads(s):
        b = s % 4
        A(f"ds_read_b128 {vr(OF3+4*b,4)}, v{vTR+1} offset:{s*1024}")
        for u in range(2):
            A(f"ds_read_b64_tr_b16 {vr(WF3+4*b+2*u,2)}, v{vTR} offset:{s*2048 + u*1024}")
    for c in range(4):
        A(f"s_waitcnt vmcnt({(3-c)*2})", "s_barrier")
        if c == 0: stamp(A, 10, diag)
        for s in range(8*c, 8*c + 3): reads(s)
        for s in range(8*c, 8*c + 8):
            if s + 3 < 8*c + 8: reads(s + 3)
            A(f"s_waitcnt lgkmcnt({3*min(3, 8*c+7-s)})", mfma(AC3, WF3+4*(s%4), OF3+4*(s%4), "0" if s == 0 else None))
    A("s_nop 7", "s_nop 3")
    for p in range(8):
        A(f"v_pk_fma_f32 {vr(AC3+2*p,2)}, {vr(AC3+2*p,2)}, {vr(GA+2*p,2)}, {vr(E+2*p,2)}")
    for p in range(8):
        A(f"v_cvt_pk_bf16_f32 v{AC3+p}, v{AC3+2*p}, v{AC3+2*p+1}")
    A(f"buffer_store_dwordx4 {vr(AC3,4)}, v{vXO}, {sr(SOUT,4)}, s{sST} offen", f"buffer_store_dwordx4 {vr(AC3+4,4)}, v{vXO}, {sr(SOUT,4)}, s{sST} offen offset:32")
    stamp(A, 11, diag)
    A.label(f"{name}_fin")
    stamp_store(A, diag, 0, SWS)
    A.label(f"{name}_end")
    A("s_endpgm")
    return A.text(), descriptor(name, 256), (256, 512, LDS_BYTES)

def build(path, diag=False):
    name = NAME + "_kernel"
    code, d, (g, b, lds) = gen(name, diag)
    s = open("cdna_kernels/" + NAME + ".s.ref").read().split("; Override launch")[0]
    s += f"; @launch grid=({g},1,1) block=({b},1,1) lds={lds}\n"
    s += '.amdgcn_target "amdgcn-amd-amdhsa--gfx950"\n.text\n' + code + '\n.section .rodata,"a"\n' + d + "\n"
    open(path, "w").write(s)

if __name__ == "__main__":
    import sys
    if len(sys.argv) > 2:
        OPT = set(sys.argv[2].split(","))
        build(sys.argv[1], diag="nodiag" not in OPT)
    else:
        build("mega.s"); build("megad.s", diag=True)
```

```python
from common import *
import math

OPT = set()
L_K = 0
L_RING = 8192
L_VTOP = 147456
L_W2A = 65536
L_Q = 147456
ST_X, ST_CS, ST_R = L_Q, L_Q + 2048, L_Q + 4096
L_ONE = 155648
ST_C1 = 159744
LDS_BYTES = 163840
L_WO, L_O = 0, 65536
WS_CNT = 0x1100000
C_QKV, C_H, C_O = 0, 16, 32
SPIN = 200000
SX, SWQ, SW1, SWS, SW2, SWO, SOUT = 8, 12, 16, 20, 24, 28, 32
PB1, PB2, PDBG = 36, 38, 40
sRB, sG, sRBLK, sROLE, sXO, sWQO, sW1O, sM0, sT0, sT1, sT2, sHASF, sIT, sST, sROT, sH, sQB, sMW, sSP, sBAR, sFB, sKV = range(42, 64)
sHO, sPH, sWO = 97, 98, 99
vL, vSO = 1, 2
ACC = [16, 32]
WB = 48
vXR, vWR = 64, 68
vDX, vDW, vD1 = 72, 76, 72
vSX, vCS = 84, 88
vSQ = 82
SEL = 96
EX, EW = 100, 104
vB1, vRS, vGA, vGB, vGS, vC1 = 108, 111, 112, 113, 114, 115
vCUR = 4
T = 116
X = 128
SA, SB_, OA, OB, CA, CB = 16, 32, 64, 80, 96, 112
QA, QB, KB, VB = 128, 132, 136, 144
vKA, vVA, vVI, vIDX, vK0 = 160, 161, 162, 164, 165
TA = 168

class VM:
    def __init__(self, A): self.A, self.ops = A, []
    def op(self, tag, *ins):
        for i in ins:
            self.A(i)
            if i.startswith(("buffer_", "global_")): self.ops.append(tag)
    def n_after(self, tag):
        idx = max(i for i, t in enumerate(self.ops) if t == tag)
        return len(self.ops) - 1 - idx
    def wait(self, tag, extra=""):
        self.A(f"s_waitcnt vmcnt({self.n_after(tag)}){extra}")
    def clone(self):
        v = VM(self.A); v.ops = list(self.ops); return v

def m16(d, a, b, first=False):
    return f"v_mfma_f32_16x16x32_bf16 {vr(d,4)}, {vr(a,4)}, {vr(b,4)}, {'0' if first else vr(d,4)}"
def smf(O, V, S):
    return f"v_smfmac_f32_32x32x32_bf16 {vr(O,16)}, {vr(V,4)}, {vr(S,8)}, v{vIDX}"

def kc_of(A, c):
    A(f"s_add_u32 s{sT1}, s{sROT}, {c}", f"s_and_b32 s{sT1}, s{sT1}, 7")

def dma_p1(c):
    slot = L_RING + (c % 4) * 32768
    it1 = [f"s_add_u32 s{sT1}, s{sROT}, {c}", f"s_and_b32 s{sT1}, s{sT1}, 7", f"s_lshl_b32 s{sT0}, s{sT1}, 7", f"s_mul_i32 s{sT1}, s{sT1}, {64*3072}",
           f"s_add_u32 m0, s{sM0}, {slot}", f"s_add_u32 s{sT0}, s{sXO}, s{sT0}"]
    it1 += [f"buffer_load_dwordx4 v{vDX+p}, {sr(SX,4)}, s{sT0} offen offset:{p*1024} lds" for p in range(4)]
    it2 = [f"s_add_u32 m0, s{sMW}, {slot+16384}", f"s_add_u32 s{sT0}, s{sWQO}, s{sT1}"]
    it2 += [f"buffer_load_dwordx4 v{vDW+p}, {sr(SWQ,4)}, s{sT0} offen offset:{p*1024} lds" for p in range(3)]
    return [(f"p{c}", it1), (f"p{c}", it2)]

def dma_w1(q):
    return [(f"w{q}", [f"s_add_u32 s{sT1}, s{sROT}, {2*q+hh}", f"s_and_b32 s{sT1}, s{sT1}, 7", f"s_mul_i32 s{sT1}, s{sT1}, {64*3584}",
              f"s_add_u32 m0, s{sM0}, {L_RING + q*32768 + hh*16384}", f"s_add_u32 s{sT0}, s{sW1O}, s{sT1}"] +
             [f"buffer_load_dwordx4 v{vD1+p}, {sr(SW1,4)}, s{sT0} offen offset:{p*1024} lds" for p in range(4)]) for hh in range(2)]

def wbuf(s, role):
    return ([48, 56, 8] if role == 0 else [48, 52, 56])[s % 3]

def p1_reads(A, s, role):
    c, i = divmod(s, 4)
    off = L_RING + (c % 2) * 32768
    wb = wbuf(s, role)
    A(f"ds_read_b128 {vr(X+4*s,4)}, v{vXR+i} offset:{off}")
    for b in range(2 if role == 0 else 1):
        for u in range(2):
            A(f"ds_read_b64_tr_b16 {vr(wb+4*b+2*u,2)}, v{vWR+i} offset:{off+16384+u*768+b*64}")

def p1_loop(A, vm, orient, role, diag):
    nb = 2 if role == 0 else 1
    pend = dma_p1(2) + dma_p1(3) if role == 1 else []
    for s in range(32):
        c, i = divmod(s, 4)
        wb = wbuf(s, role)
        if i == 2:
            while pend:
                t_, ins = pend.pop(0); vm.op(t_, *ins)
            if c == 2: stamp(A, 8, diag)
            if c < 7 and role == 1: vm.wait(f"p{c+1}")
            if c == 2: stamp(A, 9, diag)
            A("s_barrier")
            if c == 2: stamp(A, 10, diag)
            if role == 1 and 1 <= c <= 4: pend = dma_p1(c + 3)
            if role == 0 and c >= 5: pend = dma_w1(c - 5)
        if s + 2 < 32:
            if (s + 2) % 8 in (0, 1, 2, 3) and s + 2 >= 8:
                j = (s + 2) % 4
                A(f"v_xor_b32 v{vXR+j}, 0x10000, v{vXR+j}", f"v_xor_b32 v{vWR+j}, 0x10000, v{vWR+j}")
            p1_reads(A, s + 2, role)
        A(f"s_waitcnt lgkmcnt({(1+2*nb) * min(2, 31-s)})")
        for b in range(nb):
            a, bb = (wb + 4*b, X + 4*s) if orient == "T" else (X + 4*s, wb + 4*b)
            A(mfma(ACC[b], a, bb, "0" if s == 0 else None))
        if role == 1:
            A(m16(vSX, SEL, X + 4*s, s == 0))
        if i == 3:
            for b in range(nb):
                A(m16(vCS + 4*b, SEL, wb + 4*b, c == 0))
        if pend:
            t_, ins = pend.pop(0); vm.op(t_, *ins)
            if s == 0:
                t_, ins = pend.pop(0); vm.op(t_, *ins)
        if i == 3 and role == 1:
            for r in range(16):
                A(f"v_dot2_f32_bf16 v{vSQ+(r&1)}, v{X+16*c+r}, v{X+16*c+r}, v{vSQ+(r&1)}")
    assert not pend

def hilo(A, dst, src, t):
    A(f"v_cvt_pk_bf16_f32 v{t}, v{src}, v{src}", f"v_and_b32 v{t}, 0xffff0000, v{t}", f"v_sub_f32 v{t+1}, v{src}, v{t}",
      f"v_cvt_pk_bf16_f32 v{dst}, v{t}, v{t+1}")
def ew_from_cs(A, cs, t):
    A(f"v_cvt_pk_bf16_f32 v{EW}, v{cs}, v{cs}", f"v_and_b32 v{t}, 0xffff0000, v{EW}", f"v_sub_f32 v{t}, v{cs}, v{t}",
      f"v_cvt_pk_bf16_f32 v{EW+1}, v{t}, v{t}")

_lbl = [0]
def poll(A, name, voff, vt, target, lanes):
    _lbl[0] += 1; n = _lbl[0]
    A(f"s_mov_b32 s{sSP}, {SPIN}", f"s_mov_b64 exec, {(1 << lanes) - 1}")
    A.label(f"{name}_pl{n}")
    A(f"buffer_load_dword v{vt}, v{voff}, {sr(SWS,4)}, 0 offen sc1", "s_waitcnt vmcnt(0)", f"v_cmp_ne_u32 vcc, {target}, v{vt}",
      f"s_cbranch_vccz {name}_pd{n}", "s_sleep 3", f"s_sub_u32 s{sSP}, s{sSP}, 1", f"s_cbranch_scc0 {name}_pl{n}")
    A.label(f"{name}_pd{n}")
    A("s_mov_b64 exec, -1")

def cleared(A, name):
    _lbl[0] += 1; n = _lbl[0]
    A("s_cmp_lg_u32 s3, 4", f"s_cbranch_scc1 {name}_zd{n}", f"s_mov_b32 s{sSP}, {SPIN}")
    A.label(f"{name}_zp{n}")
    A(f"v_readfirstlane_b32 s{sT0}, v3", f"s_cmp_lg_u32 s{sT0}, 0", f"s_cbranch_scc1 {name}_zd{n}", "s_sleep 3",
      f"global_load_dword v3, v110, s[{PDBG}:{PDBG+1}] sc1", "s_waitcnt vmcnt(0)", f"s_sub_u32 s{sSP}, s{sSP}, 1", f"s_cbranch_scc0 {name}_zp{n}")
    A.label(f"{name}_zd{n}")

def signal(A, sidx, vt):
    A(f"s_lshl_b32 s{sT0}, s{sidx}, 7", f"s_add_u32 s{sT0}, s{sT0}, {WS_CNT}", f"v_mov_b32 v{vt}, 1", f"v_mov_b32 v{vt+1}, 0", "s_mov_b64 exec, 1",
      f"buffer_atomic_add v{vt}, v{vt+1}, {sr(SWS,4)}, s{sT0} offen sc1", "s_mov_b64 exec, -1")

def tile(A, S, O, V, Sn, K, Q, C, pO, pV, slots):
    e = [f"v_exp_f32 v{S+i}, v{S+i}" for i in range(16)]
    A(*e[:5]); A(smf(pO, pV+4, Sn+8), *slots[0])
    A(*e[5:7]); A(mfma(Sn, K, Q, C), *slots[1])
    A(*e[7:10]); A(smf(O, V, S), *slots[2])
    A(*e[10:])

def attn_loop(A, name, fast):
    ca, cb = ("0", "0") if fast else (CA, CB)
    A(f"ds_read_b128 {vr(KB,4)}, v{vKA}", f"ds_read_b128 {vr(VB,4)}, v{vVA} offset:3072", f"ds_read_b128 {vr(VB+4,4)}, v{vVA} offset:3584",
      "s_waitcnt lgkmcnt(0)", mfma(SA, KB, QA, ca), f"s_mov_b32 s{sIT}, 0", "s_nop 7", "s_nop 2")
    A.raw(".p2align 6")
    A.label(name)
    for st in range(8):
        Kc, Kn = (KB, KB+4) if st % 2 == 0 else (KB+4, KB)
        Vc, Vn = (VB, VB+8) if st % 2 == 0 else (VB+8, VB)
        rk = f"ds_read_b128 {vr(Kn,4)}, v{vKA} offset:{(st+1)*1024}"
        vo = (3 - (st + 1) % 4) * 1024
        rv1 = f"ds_read_b128 {vr(Vn,4)}, v{vVA} offset:{vo}"
        rv2 = f"ds_read_b128 {vr(Vn+4,4)}, v{vVA} offset:{vo+512}"
        if st == 7 and fast:
            A(f"s_cmp_lt_u32 s{sIT}, 2", f"s_cbranch_scc0 {name}_nb", "s_waitcnt vmcnt(0)", "s_barrier")
            A.label(f"{name}_nb")
        if st % 4 == 3:
            A(f"v_sub_u32 v{vVA}, v{vVA}, v{vVI}")
        last = [f"s_add_u32 s{sIT}, s{sIT}, 1"] if st == 7 else []
        cmp_ = [f"s_cmp_lt_u32 s{sIT}, 8"] if st == 7 else []
        tile(A, SA, OA, Vc, SB_, Kc, QB, cb, OB, Vn, [[rk], ["s_waitcnt lgkmcnt(1)"], [rv1]])
        tile(A, SB_, OB, Vc, SA, Kn, QA, ca, OA, Vc, [["s_waitcnt lgkmcnt(1)", rv2], last, cmp_])
    A(f"v_add_u32 v{vKA}, 8192, v{vKA}", f"s_cbranch_scc1 {name}")
    A("s_nop 1", smf(OB, VB+8+4, SB_+8), "s_waitcnt lgkmcnt(0)", "s_nop 7", "s_nop 7")

def attn_init(A):
    t = TA
    A(f"v_and_b32 v{t}, 15, v{vL}", f"v_lshlrev_b32 v{t}, 4, v{t}", f"v_lshrrev_b32 v{t+1}, 5, v{vL}", f"v_lshl_add_u32 v{t+1}, v{t+1}, 8, v{t}",
      f"v_add_u32 v{t+1}, {L_VTOP-4096}, v{t+1}", f"v_add_u32 v{t}, {L_ONE}, v{t}", f"v_and_b32 v{t+2}, 16, v{vL}", f"v_cmp_eq_u32 vcc, 0, v{t+2}",
      f"v_mov_b32 v{t+2}, 4096", f"v_mov_b32 v{vKA}, v{vK0}", f"v_cndmask_b32 v{vVA}, v{t}, v{t+1}, vcc", f"v_cndmask_b32 v{vVI}, 0, v{t+2}, vcc")
    for r in list(range(OA, OA+32)) + list(range(SB_+8, SB_+16)) + [VB+12, VB+13, VB+14, VB+15]:
        A(f"v_mov_b32 v{r}, 0")

def tr128_addr(A, dst, t, s_nb, base):
    A(f"v_bfe_u32 v{t}, v{vL}, 2, 2", f"v_lshrrev_b32 v{t+1}, 5, v{vL}", f"v_lshl_add_u32 v{t+1}, v{t+1}, 2, v{t}", f"v_lshlrev_b32 v{t+1}, 7, v{t+1}",
      f"v_lshrrev_b32 v{t}, 1, v{t}", f"v_xor_b32 v{t}, s{s_nb}, v{t}", f"v_lshl_add_u32 v{t+1}, v{t}, 6, v{t+1}",
      f"v_bfe_u32 v{t}, v{vL}, 4, 1", f"v_lshl_add_u32 v{t+1}, v{t}, 5, v{t+1}",
      f"v_and_b32 v{t}, 1, v{vL}", f"v_lshl_add_u32 v{t+1}, v{t}, 4, v{t+1}", f"v_bfe_u32 v{t}, v{vL}, 1, 1", f"v_lshl_add_u32 v{t+1}, v{t}, 3, v{t+1}",
      f"v_add_u32 v{dst}, {base}, v{t+1}")

def dma128_off(A, dst, t):
    A(f"v_lshrrev_b32 v{t}, 3, v{vL}", f"v_lshlrev_b32 v{t}, 10, v{t}", f"v_bfe_u32 v{t+1}, v{vL}, 4, 1", f"v_lshlrev_b32 v{t+1}, 2, v{t+1}",
      f"v_and_b32 v{t+2}, 7, v{vL}", f"v_xor_b32 v{t+1}, v{t+1}, v{t+2}", f"v_lshl_add_u32 v{dst}, v{t+1}, 4, v{t}", f"v_add_u32 v{dst+1}, {8192-1024}, v{dst}")

def p3_common_dma_wo(A, vDW3):
    A(f"s_lshl_b32 s{sT1}, s3, 16", f"s_lshl_b32 s{sT0}, s{sQB}, 7", f"s_add_u32 s{sT1}, s{sT1}, s{sT0}", f"s_lshl_b32 s{sT2}, s3, 13")
    for j in range(4):
        A(f"s_add_u32 m0, s{sT2}, {L_WO + j*2048}", f"s_add_u32 s{sT0}, s{sT1}, {j*16384}",
          f"buffer_load_dwordx4 v{vDW3}, {sr(SWO,4)}, s{sT0} offen lds", f"buffer_load_dwordx4 v{vDW3+1}, {sr(SWO,4)}, s{sT0} offen offset:1024 lds")

def p3_common_dma_o(A):
    A(f"s_lshl_b32 s{sT1}, s{sH}, 16", f"s_lshl_b32 s{sT2}, s3, 10", f"s_add_u32 s{sT1}, s{sT1}, s{sT2}", f"s_add_u32 s{sT1}, s{sT1}, {WS_O}")
    for c in range(4):
        for tb in range(2):
            A(f"s_add_u32 m0, s{sT2}, {L_O + tb*32768 + c*8192}", f"s_add_u32 s{sT0}, s{sT1}, {tb*32768 + c*8192}",
              f"buffer_load_dwordx4 v{vSO}, {sr(SWS,4)}, s{sT0} offen sc1 lds")

def gen(name, diag=False):
    A = Asm()
    kernel_begin(A, name)
    A("s_cmp_ge_u32 s2, 256", f"s_cbranch_scc1 {name}_end")
    stamp_init(A, diag); stamp(A, 0, diag)
    A(f"s_load_dwordx4 s[4:7], s[0:1], {KA_X}")
    for q, ka in ((SW1, KA_W1), (SWS, KA_WS), (PB1, KA_B1), (SW2, KA_W2), (PB2, KA_B2), (SWO, KA_WO), (SOUT, KA_OUT), (PDBG, KA_DBG)):
        A(f"s_load_dwordx2 s[{q}:{q+1}], s[0:1], {ka}")
    A("v_lshrrev_b32 v2, 6, v0", f"v_and_b32 v{vL}, 63, v0", "v_readfirstlane_b32 s3, v2")
    A.c("work decode (id&7 only steers L2 locality)")
    A(f"s_and_b32 s{sROT}, s2, 7", f"s_lshr_b32 s{sT1}, s2, 3", f"s_lshr_b32 s{sT2}, s{sT1}, 3", f"s_and_b32 s{sQB}, s{sT1}, 7",
      f"s_and_b32 s{sRB}, s{sROT}, 1", f"s_lshl_b32 s{sRB}, s{sRB}, 3", f"s_add_u32 s{sRB}, s{sRB}, s{sQB}",
      f"s_lshr_b32 s{sG}, s{sROT}, 1", f"s_lshl_b32 s{sG}, s{sG}, 2", f"s_add_u32 s{sG}, s{sG}, s{sT2}",
      f"s_lshl_b32 s{sH}, s{sROT}, 2", f"s_add_u32 s{sH}, s{sH}, s{sT2}",
      f"s_lshr_b32 s{sROT}, s{sROT}, 1", f"s_add_u32 s{sROT}, s{sROT}, s{sQB}", f"s_lshl_b32 s{sT2}, s{sT2}, 1",
      f"s_add_u32 s{sROT}, s{sROT}, s{sT2}" if "norot" not in OPT else f"s_mov_b32 s{sROT}, 0",
      f"s_and_b32 s{sRBLK}, s3, 3", f"s_lshr_b32 s{sROLE}, s3, 2", f"s_lshl_b32 s{sM0}, s{sRBLK}, 12",
      f"s_mov_b32 s{SX+2}, {SZ_X}", f"s_mov_b32 s{SX+3}, 0x20000", f"s_mov_b32 s{SWQ+2}, {SZ_WQKV}", f"s_mov_b32 s{SWQ+3}, 0x20000",
      f"s_cmp_eq_u32 s{sROLE}, 0", f"s_cbranch_scc1 {name}_pro0")
    t = T
    vms = [VM(A), VM(A)]
    A.c("role 1: DMA lane offsets.  x: row = 32 rblk + 8p + (l>>3), piece (l&7) ^ ((row>>1)&7)")
    A(f"s_lshl_b32 s{sXO}, s{sRB}, 2", f"s_add_u32 s{sXO}, s{sXO}, s{sRBLK}", f"s_lshl_b32 s{sXO}, s{sXO}, 15",
      f"s_mul_i32 s{sWQO}, s{sG}, 192", f"s_mul_i32 s{sMW}, s{sRBLK}, 192",
      f"v_lshrrev_b32 v{t}, 3, v{vL}", f"v_lshlrev_b32 v{t}, 10, v{t}",
      f"v_lshrrev_b32 v{t+1}, 4, v{vL}", f"v_and_b32 v{t+2}, 7, v{vL}", f"v_xor_b32 v{t+2}, v{t+1}, v{t+2}",
      f"v_lshl_add_u32 v{vDX}, v{t+2}, 4, v{t}", f"v_xor_b32 v{vDX+1}, 64, v{vDX}", f"v_add_u32 v{vDX+1}, {8192-1024}, v{vDX+1}",
      f"v_add_u32 v{vDX+2}, {16384-2048}, v{vDX}", f"v_add_u32 v{vDX+3}, {16384-2048}, v{vDX+1}")
    A.c("Wqkv chunk = 64 rows x 192 B, linear: piece q = 192 rblk + 64 p + lane, row = q / 12")
    for p in range(3):
        A(f"v_add_u32 v{t}, s{sMW}, v{vL}" if p == 0 else f"v_add_u32 v{t}, 64, v{t}", f"v_mul_u32_u24 v{t+2}, 43691, v{t}",
          f"v_lshrrev_b32 v{t+2}, 19, v{t+2}", f"v_mul_u32_u24 v{t+2}, {3072-192}, v{t+2}", f"v_lshl_add_u32 v{vDW+p}, v{t}, 4, v{t+2}")
        if p: A(f"v_subrev_u32 v{vDW+p}, {1024*p}, v{vDW+p}")
    A(f"s_lshl_b32 s{sMW}, s{sMW}, 4", "s_waitcnt lgkmcnt(0)",
      f"s_mov_b32 s{SX}, s4", f"s_and_b32 s{SX+1}, s5, 0xffff", f"s_mov_b32 s{SWQ}, s6", f"s_and_b32 s{SWQ+1}, s7, 0xffff")
    for c in range(2):
        for t_, ins in dma_p1(c): vms[1].op(t_, *ins)
    A(f"s_branch {name}_pro")
    A.label(f"{name}_pro0")
    A("s_waitcnt lgkmcnt(0)", f"s_mov_b32 s{SX}, s4", f"s_and_b32 s{SX+1}, s5, 0xffff", f"s_mov_b32 s{SWQ}, s6", f"s_and_b32 s{SWQ+1}, s7, 0xffff")
    A(f"v_lshrrev_b32 v{t+1}, 4, v{vL}", f"s_lshl_b32 s{sT0}, s{sRBLK}, 4", f"v_add_u32 v{t}, s{sT0}, v{t+1}", f"v_lshlrev_b32 v{t+2}, 2, v{t+1}",
      f"v_and_b32 v{t+3}, 15, v{vL}", f"v_xor_b32 v{t+2}, v{t+2}, v{t+3}", f"v_lshlrev_b32 v{t+2}, 4, v{t+2}",
      f"v_mul_u32_u24 v{vD1}, 3584, v{t}", f"v_add_u32 v{vD1}, v{vD1}, v{t+2}")
    for p in range(1, 4): A(f"v_add_u32 v{vD1+p}, {p*(4*3584-1024)}, v{vD1}", f"v_mov_b32 v{vDW+p-1}, 0")
    A.label(f"{name}_pro")
    stamp(A, 1, diag)
    t = T + 8
    for q, sz in ((SWS, WS_USED), (SW1, SZ_W1), (SW2, SZ_W2), (SWO, SZ_WO), (SOUT, SZ_OUT)):
        A(f"s_and_b32 s{q+1}, s{q+1}, 0xffff", f"s_mov_b32 s{q+2}, {sz}", f"s_mov_b32 s{q+3}, 0x20000")
    A(f"v_lshlrev_b32 v{vSO}, 4, v{vL}", f"s_min_u32 s{sW1O}, s{sG}, 13", f"s_lshl_b32 s{sW1O}, s{sW1O}, 8")
    A.c("groups 14, 15 have no FFN1 tile: their W1 loads read zeros through an empty descriptor")
    A(f"s_cmp_lt_u32 s{sG}, 14", f"s_cselect_b32 s{SW1+2}, {SZ_W1}, 0", f"s_cselect_b32 s{sHASF}, 1, 0")
    A.c("workgroup 0 clears the hand-off counters and then says so in d_debug (zero at every launch)")
    A(f"s_or_b32 s{sT0}, s2, s3", f"s_cmp_lg_u32 s{sT0}, 0", f"s_cbranch_scc1 {name}_noz",
      f"v_lshlrev_b32 v{t}, 7, v{vL}", f"v_mov_b32 v{t+1}, 0", f"s_mov_b32 s{sT0}, {WS_CNT}",
      f"buffer_store_dword v{t+1}, v{t}, {sr(SWS,4)}, s{sT0} offen sc1", "s_waitcnt vmcnt(0)",
      f"v_mov_b32 v{t}, 1", "s_mov_b64 exec, 1", f"global_store_dword v{t+1}, v{t}, s[{PDBG}:{PDBG+1}] sc1", "s_mov_b64 exec, -1", "s_waitcnt vmcnt(0)")
    A.label(f"{name}_noz")
    A.c("LDS fragment addresses; the k-steps of a chunk are visited in the order i ^ rblk")
    A(f"v_and_b32 v{t}, 31, v{vL}", f"v_lshrrev_b32 v{t+1}, 5, v{vL}", f"v_bfe_u32 v{t+2}, v{vL}, 1, 3", f"v_xor_b32 v{t+2}, v{t+1}, v{t+2}",
      f"s_lshl_b32 s{sT0}, s{sRBLK}, 1", f"v_xor_b32 v{t+2}, s{sT0}, v{t+2}", f"v_lshlrev_b32 v{t+2}, 4, v{t+2}",
      f"s_lshl_b32 s{sT0}, s{sRBLK}, 5", f"v_add_u32 v{t+3}, s{sT0}, v{t}", f"v_lshl_add_u32 v{vXR}, v{t+3}, 7, v{t+2}")
    for i in range(1, 4):
        A(f"v_xor_b32 v{vXR+i}, {i*32}, v{vXR}")
    A(f"v_bfe_u32 v{t+2}, v{vL}, 2, 2", f"v_lshl_add_u32 v{t+3}, v{t+1}, 3, v{t+2}", f"v_mul_u32_u24 v{t+3}, 192, v{t+3}",
      f"v_bfe_u32 v{t+2}, v{vL}, 4, 1", f"v_lshl_add_u32 v{t+3}, v{t+2}, 5, v{t+3}", f"v_and_b32 v{t+2}, 3, v{vL}", f"v_lshl_add_u32 v{t+3}, v{t+2}, 3, v{t+3}")
    for i in range(4):
        A(f"s_xor_b32 s{sT0}, s{sRBLK}, {i}", f"s_mul_i32 s{sT0}, s{sT0}, 3072", f"s_lshl_b32 s{sT1}, s{sROLE}, 7", f"s_add_u32 s{sT0}, s{sT0}, s{sT1}",
          f"v_add_u32 v{vWR+i}, s{sT0}, v{t+3}")
    A(f"v_lshrrev_b32 v{t}, 2, v{vL}", f"v_lshrrev_b32 v{t+1}, 4, v{vL}", f"v_xor_b32 v{t}, v{t}, v{t+1}", f"v_and_b32 v{t}, 1, v{t}",
      f"v_and_b32 v{t+1}, 3, v{vL}", f"v_or_b32 v{t}, v{t}, v{t+1}", f"v_cmp_eq_u32 vcc, 0, v{t}", f"v_mov_b32 v{t+1}, 0x3f803f80",
      f"v_mov_b32 v{vSQ}, 0", f"v_mov_b32 v{vSQ+1}, 0")
    for r in range(4): A(f"v_cndmask_b32 v{SEL+r}, 0, v{t+1}, vcc")
    A.c("rows of the V operand beyond the 16 head dims: ones in rows 16 and 20 (row sums), zero elsewhere")
    A(f"v_and_b32 v{t}, 11, v0", f"v_cmp_eq_u32 vcc, 0, v{t}", f"v_lshlrev_b32 v{t}, 3, v0", f"v_add_u32 v{t}, {L_ONE}, v{t}")
    A(f"v_lshrrev_b32 v{t+2}, 1, v0", f"v_and_b32 v{t+2}, 11, v{t+2}", f"v_cmp_eq_u32 vcc, 0, v{t+2}", "s_nop 1",
      f"v_cndmask_b32 v{t+2}, 0, v{t+1}, vcc", f"v_cndmask_b32 v{t+3}, 0, v{t+1}, vcc", f"ds_write_b64 v{t}, {vr(t+2,2)}")
    A(f"s_cmp_eq_u32 s{sROLE}, 1", f"s_cbranch_scc1 {name}_r1")
    for role in range(2):
        vm = vms[role]
        if role: A.label(f"{name}_r1")
        if role: vm.wait("p0")
        A("s_barrier")
        stamp(A, 2, diag)
        p1_reads(A, 0, role); p1_reads(A, 1, role)
        A(f"s_cmp_ge_u32 s{sG}, {11 if role == 0 else 10}", f"s_cbranch_scc1 {name}_p1n{role}")
        v2 = vm.clone()
        p1_loop(A, vm, "T", role, diag); A(f"s_branch {name}_p1done")
        A.label(f"{name}_p1n{role}")
        p1_loop(A, v2, "N", role, diag)
        if role == 0: A(f"s_branch {name}_p1done")
    A.label(f"{name}_p1done")
    t = T
    stamp(A, 3, diag)
    A.c("exchange partial statistics through LDS")
    A(f"v_and_b32 v{t}, 31, v{vL}", f"v_lshrrev_b32 v{t+1}, 5, v{vL}",
      f"s_lshl_b32 s{sT0}, s{sRBLK}, 9", f"s_add_u32 s{sT0}, s{sT0}, {ST_X}", f"v_lshl_add_u32 v{t+2}, v{t}, 4, s{sT0}",
      f"s_lshl_b32 s{sT0}, s{sROLE}, 10", f"s_add_u32 s{sT0}, s{sT0}, {ST_CS}", f"v_lshl_add_u32 v{t+4}, v{t}, 4, s{sT0}",
      f"s_lshl_b32 s{sT0}, s{sRBLK}, 2", f"v_add_u32 v{t+5}, s{sT0}, v{t+4}", f"v_add_f32 v{vSQ}, v{vSQ}, v{vSQ+1}",
      f"v_lshl_add_u32 v{t+3}, v{t+1}, 2, v{t+2}",
      f"ds_write_b32 v{t+5}, v{vCS}",
      f"s_cmp_eq_u32 s{sROLE}, 1", f"s_cbranch_scc1 {name}_sx1", f"ds_write_b32 v{t+5}, v{vCS+4} offset:512", f"s_branch {name}_sx2")
    A.label(f"{name}_sx1")
    A(f"ds_write_b32 v{t+2}, v{vSX}", f"ds_write_b32 v{t+3}, v{vSQ} offset:4")
    A.label(f"{name}_sx2")
    A("v_mov_b32 v110, 0", "s_waitcnt lgkmcnt(0)", "s_barrier", f"global_load_dword v3, v110, s[{PDBG}:{PDBG+1}] sc1")
    A(f"s_cmp_eq_u32 s{sROLE}, 1", f"s_cbranch_scc1 {name}_now3")
    for t_, ins in dma_w1(3): A(*ins)
    A.label(f"{name}_now3")
    A(f"v_and_b32 v{t+1}, 31, v{vL}", f"s_lshl_b32 s{sT0}, s{sROLE}, 7", f"s_add_u32 s{sT0}, s{sT0}, s{sW1O}", f"v_lshl_add_u32 v{t+1}, v{t+1}, 1, s{sT0}",
      f"global_load_ushort v{vB1}, v{t+1}, s[{PB1}:{PB1+1}]", f"global_load_ushort v{vB1+1}, v{t+1}, s[{PB1}:{PB1+1}] offset:64")
    A(f"ds_read_b128 {vr(8,4)}, v{t+2}", f"ds_read_b128 {vr(WB,4)}, v{t+4}", f"ds_read_b128 {vr(WB+4,4)}, v{t+4} offset:512", "s_waitcnt lgkmcnt(2)")
    eps = 1e-5
    A.c("mean, variance, rstd; the second LayerNorm in closed form: LN(LN(x)) = (x-mean)/sqrt(var + eps*(var+eps))")
    A(f"v_add_f32 v10, v9, v10", f"v_mul_f32 v8, {fl(-1.0/512)}, v8", f"v_mul_f32 v10, {fl(1.0/512)}, v10",
      f"v_fma_f32 v10, -v8, v8, v10", f"v_max_f32 v10, 0, v10",
      f"v_add_f32 v9, {fl(eps)}, v10", f"v_rsq_f32 v{vRS}, v9",
      f"v_fmamk_f32 v9, v9, {fl(eps)}, v10", f"v_rsq_f32 v11, v9", "s_nop 0", f"v_mul_f32 v{vGS}, v9, v11")
    k = 2.0 * math.sqrt(2.0 / math.pi) * math.log2(math.e)
    A(f"v_mul_f32 v{vGA}, {fl(-k)}, v11", f"v_mul_f32 v12, v11, v11", f"v_mul_f32 v12, {fl(0.044715)}, v12", f"v_mul_f32 v{vGB}, v{vGA}, v12")
    hilo(A, EX, 8, 12); hilo(A, EX+2, vGS, 12)
    A(f"v_cmp_gt_u32 vcc, 32, v{vL}", f"v_mov_b32 v{EX+3}, 0", f"v_mov_b32 v{EW+3}, 0",
      f"v_cndmask_b32 v{EX}, 0, v{EX}, vcc", f"v_cndmask_b32 v{EX+2}, 0, v{EX+2}, vcc", f"v_mov_b32 v{EW+2}, 0", f"v_mov_b32 v{EX+1}, v{EX}")
    A.c("QKV epilogue: rank-1 mean correction as one extra MFMA step, scale by rstd, store fragments (block nb -> nb*128 KB)")
    A("s_waitcnt lgkmcnt(0)")
    for b in range(2):
        w = WB + 4*b
        A(f"v_add_f32 v{w}, v{w}, v{w+1}", f"v_add_f32 v{w+2}, v{w+2}, v{w+3}", f"v_add_f32 v{w}, v{w}, v{w+2}")
    A(f"s_mul_i32 s{sT2}, s{sG}, 3", f"s_lshl_b32 s{sT0}, s{sROLE}, 1", f"s_add_u32 s{sT2}, s{sT2}, s{sT0}",
      f"s_lshl_b32 s{sST}, s{sT2}, 17", f"s_lshl_b32 s{sT0}, s{sRB}, 2", f"s_add_u32 s{sT0}, s{sT0}, s{sRBLK}", f"s_lshl_b32 s{sT0}, s{sT0}, 10",
      f"s_add_u32 s{sST}, s{sST}, s{sT0}", f"s_cmp_ge_u32 s{sT2}, 32", f"s_cbranch_scc1 {name}_epiv")
    for b in range(2):
        if b: A(f"s_cmp_eq_u32 s{sROLE}, 1", f"s_cbranch_scc1 {name}_epidone")
        ew_from_cs(A, WB + 4*b, t)
        A(f"s_cmp_lt_u32 s{sT2}, {16-b}", f"s_cselect_b32 s{sT0}, {fl(0.25*math.log2(math.e))}, 1.0", mfma(ACC[b], EW, EX),
          f"v_mul_f32 v{t+1}, s{sT0}, v{vRS}", "s_nop 7", "s_nop 2")
        for p in range(8):
            A(f"v_pk_mul_f32 {vr(ACC[b]+2*p,2)}, {vr(ACC[b]+2*p,2)}, {vr(t,2)} op_sel:[0,1] op_sel_hi:[1,1]")
        for p in range(8):
            A(f"v_cvt_pk_bf16_f32 v{ACC[b]+p}, v{ACC[b]+2*p}, v{ACC[b]+2*p+1}")
        for m in range(2):
            A(f"s_add_u32 s{sT0}, s{sST}, {(2*b+m)*65536}", f"buffer_store_dwordx4 {vr(ACC[b]+4*m,4)}, v{vSO}, {sr(SWS,4)}, s{sT0} offen sc1")
    A(f"s_branch {name}_epidone")
    A.label(f"{name}_epiv")
    A(f"v_and_b32 v{t}, 31, v{vL}", f"s_lshl_b32 s{sT0}, s3, 7", f"s_add_u32 s{sT0}, s{sT0}, {ST_R}",
      f"v_lshl_add_u32 v{t+1}, v{t}, 2, s{sT0}", f"ds_write_b32 v{t+1}, v{vRS}",
      f"v_lshrrev_b32 v{t+1}, 5, v{vL}", f"v_lshl_add_u32 v{t+2}, v{t+1}, 4, s{sT0}",
      f"v_lshrrev_b32 v{t+3}, 4, v{t}", f"v_lshlrev_b32 v{t+3}, 16, v{t+3}", f"v_lshl_add_u32 v{t+3}, v{t+1}, 8, v{t+3}",
      f"v_and_b32 v{t}, 15, v{t}", f"v_lshl_add_u32 v{t+3}, v{t}, 4, v{t+3}", "s_waitcnt lgkmcnt(0)")
    RR = 64
    for a in range(4):
        A(f"ds_read_b128 {vr(RR+4*a,4)}, v{t+2} offset:{a*32}")
    for b in range(2):
        if b: A(f"s_cmp_eq_u32 s{sROLE}, 1", f"s_cbranch_scc1 {name}_epidone")
        ew_from_cs(A, WB + 4*b, t)
        A("s_nop 1", mfma(ACC[b], EX, EW), "s_nop 7", "s_nop 3", "s_waitcnt lgkmcnt(0)")
        for p in range(8):
            A(f"v_pk_mul_f32 {vr(ACC[b]+2*p,2)}, {vr(ACC[b]+2*p,2)}, {vr(RR+2*p,2)}")
        for p in range(8):
            A(f"v_cvt_pk_bf16_f32 v{ACC[b]+p}, v{ACC[b]+2*p}, v{ACC[b]+2*p+1}")
        for m in range(2):
            A(f"s_add_u32 s{sT0}, s{sST}, {2*b*65536 + m*512}", f"buffer_store_dwordx4 {vr(ACC[b]+4*m,4)}, v{t+3}, {sr(SWS,4)}, s{sT0} offen sc1")
    A.label(f"{name}_epidone")
    stamp(A, 4, diag)
    A(f"s_cmp_eq_u32 s{sHASF}, 0", f"s_cbranch_scc1 {name}_nof")
    A.c("FFN1: x stays in registers, the W1 tile is resident in LDS")
    A(f"v_lshrrev_b32 v{t+1}, 5, v{vL}", f"v_bfe_u32 v{t+2}, v{vL}, 2, 2", f"v_lshl_add_u32 v{t+3}, v{t+1}, 3, v{t+2}", f"v_lshlrev_b32 v{t+3}, 8, v{t+3}",
      f"s_lshl_b32 s{sT0}, s{sROLE}, 1", f"v_xor_b32 v{t+2}, s{sT0}, v{t+2}", f"v_lshl_add_u32 v{t+3}, v{t+2}, 6, v{t+3}",
      f"v_bfe_u32 v{t+2}, v{vL}, 4, 1", f"v_lshl_add_u32 v{t+3}, v{t+2}, 5, v{t+3}",
      f"v_and_b32 v{t+2}, 3, v{vL}", f"v_lshl_add_u32 v{t+3}, v{t+2}, 3, v{t+3}",
      f"s_lshl_b32 s{sT0}, s{sRBLK}, 12", f"v_add_u32 v{vCUR}, s{sT0}, v{t+3}")
    for i in range(1, 4): A(f"v_xor_b32 v{vCUR+i}, {i*4096}, v{vCUR}")
    A(f"s_lshl_b32 s{sT0}, s{sRB}, 2", f"s_add_u32 s{sT0}, s{sT0}, s{sRBLK}", f"s_mul_i32 s{sST}, s{sT0}, {112*1024}",
      f"s_lshl_b32 s{sT0}, s{sW1O}, 5", f"s_add_u32 s{sST}, s{sST}, s{sT0}", f"s_lshl_b32 s{sT0}, s{sROLE}, 12", f"s_add_u32 s{sST}, s{sST}, s{sT0}",
      f"s_add_u32 s{sST}, s{sST}, {WS_H}", f"s_mov_b32 s{sIT}, 0",
      f"v_and_b32 v{t}, 31, v{vL}", f"s_lshl_b32 s{sT0}, s{sROLE}, 8", f"s_add_u32 s{sT0}, s{sT0}, {ST_C1}", f"v_lshl_add_u32 v{vC1}, v{t}, 2, s{sT0}")
    def tr_reads(addr, s, sub=False):
        c, i = divmod(s, 4)
        if s == 16:
            for r in range(4): A(f"v_xor_b32 v{addr+r}, 0x10000, v{addr+r}")
        off = L_RING + ((c >> 1) & 1) * 32768 + (c & 1) * 16384
        for u in range(2):
            A(f"ds_read_b64_tr_b16 {vr(WB+4*(s%4)+2*u,2)}, v{addr+i} offset:{off+u*1024}")
    A(f"s_cmp_eq_u32 s{sROLE}, 0", f"s_cbranch_scc1 {name}_f0")
    A("s_waitcnt vmcnt(2)", "s_barrier")
    stamp(A, 5, diag)
    A.c("role 1 first sums the columns of the W1 tile (block rblk per wave)")
    A(f"s_xor_b32 s{sT0}, s{sRBLK}, 2", f"s_lshl_b32 s{sT0}, s{sT0}, 6")
    for i in range(4): A(f"v_xor_b32 v{8+i}, s{sT0}, v{vCUR+i}")
    for s in range(3): tr_reads(8, s)
    for s in range(32):
        if s + 3 < 32: tr_reads(8, s + 3)
        A(f"s_waitcnt lgkmcnt({2*min(3, 31-s)})", m16(vCS, SEL, WB+4*(s%4), s == 0))
    A(f"v_and_b32 v{t}, 31, v{vL}", f"s_lshl_b32 s{sT0}, s{sRBLK}, 7", f"s_add_u32 s{sT0}, s{sT0}, {ST_C1}", f"v_lshl_add_u32 v{t}, v{t}, 2, s{sT0}",
      "s_nop 4", f"ds_write_b32 v{t}, v{vCS}")
    cleared(A, name)
    A("s_waitcnt vmcnt(0) lgkmcnt(0)", "s_barrier", "s_setprio 1", "s_cmp_lg_u32 s3, 4", f"s_cbranch_scc1 {name}_chain")
    signal(A, sG, t)
    A(f"s_branch {name}_chain")
    A.label(f"{name}_f0")
    A("s_waitcnt vmcnt(4)", "s_barrier", "s_setprio 2")
    stamp(A, 5, diag)
    A.label(f"{name}_chain")
    for s in range(3): tr_reads(vCUR, s)
    for s in range(32):
        if s + 3 < 32: tr_reads(vCUR, s + 3)
        A(f"s_waitcnt lgkmcnt({2*min(3, 31-s)})", mfma(ACC[0], WB+4*(s%4), X+4*s, "0" if s == 0 else None))
    A(f"s_lshl_b32 s{sT0}, s{sROLE}, 1", f"s_or_b32 s{sT0}, s{sT0}, s{sIT}", f"s_cmp_eq_u32 s{sT0}, 3", f"s_cbranch_scc1 {name}_kv0",
      f"s_cmp_lg_u32 s{sT0}, 0", f"s_cbranch_scc1 {name}_fepi", "s_setprio 0", "s_waitcnt vmcnt(0)", "s_barrier", f"s_branch {name}_fepi")
    A.label(f"{name}_nof")
    A("s_waitcnt vmcnt(0)")
    cleared(A, name)
    A("s_barrier", f"s_cmp_eq_u32 s{sROLE}, 0", f"s_cbranch_scc1 {name}_attn", "s_cmp_lg_u32 s3, 4", f"s_cbranch_scc1 {name}_kv0")
    signal(A, sG, t)
    A.label(f"{name}_kv0")
    A.c("GEMM waves: wait for this head's Q, K, V (three column groups, 16 row blocks each), then fetch Q and the first 8 key steps")
    A(f"s_lshr_b32 s{sT0}, s{sH}, 1", f"v_lshlrev_b32 v{t}, 4, v{vL}", f"v_add_u32 v{t}, s{sT0}, v{t}", f"v_mul_u32_u24 v{t}, 21846, v{t}",
      f"v_lshrrev_b32 v{t}, 16, v{t}", f"v_lshlrev_b32 v{t}, 7, v{t}", f"v_add_u32 v{t}, {WS_CNT + C_QKV*128}, v{t}")
    poll(A, name, t, t+1, 16, 3)
    stamp(A, 6, diag)
    A(f"s_lshl_b32 s{sKV}, s{sH}, 16", f"s_lshl_b32 s{sMW}, s{sRBLK}, 10", f"s_add_u32 s{sKV}, s{sKV}, s{sMW}")
    def kv(j):
        A(f"s_add_u32 m0, s{sMW}, {L_K + j*4096}", f"s_add_u32 s{sT0}, s{sKV}, {WS_K + j*4096}", f"buffer_load_dwordx4 v{vSO}, {sr(SWS,4)}, s{sT0} offen sc1 lds",
          f"s_sub_u32 m0, {L_VTOP - 1024 - j*4096}, s{sMW}", f"s_add_u32 s{sT0}, s{sKV}, {WS_V + j*4096}", f"buffer_load_dwordx4 v{vSO}, {sr(SWS,4)}, s{sT0} offen sc1 lds")
    kv(0)
    A(f"s_lshl_b32 s{sT0}, s{sQB}, 13", f"s_add_u32 s{sT0}, s{sT0}, s{sKV}", f"s_add_u32 s{sT0}, s{sT0}, s{sMW}", f"s_lshl_b32 s{sT1}, s{sMW}, 1",
      f"s_add_u32 m0, s{sT1}, {L_Q}", "s_nop 0",
      f"buffer_load_dwordx4 v{vSO}, {sr(SWS,4)}, s{sT0} offen sc1 lds", f"buffer_load_dwordx4 v{vSO}, {sr(SWS,4)}, s{sT0} offen offset:1024 sc1 lds")
    kv(1)
    A(f"s_cmp_eq_u32 s{sHASF}, 0", f"s_cbranch_scc1 {name}_g0")
    A.label(f"{name}_fepi")
    A(f"ds_read_b32 v{t}, v{vC1}", f"v_lshl_or_b32 v{EW+2}, v{vB1}, 16, v{vB1}", "s_waitcnt lgkmcnt(0)")
    ew_from_cs(A, t, t+1)
    A("s_nop 1", mfma(ACC[0], EW, EX))
    for i in range(4): A(f"v_xor_b32 v{vCUR+i}, {0x10000 + 64}, v{vCUR+i}")
    A(f"v_mov_b32 v{vB1}, v{vB1+1}", f"v_add_u32 v{vC1}, 128, v{vC1}", "s_nop 5")
    A.c("gelu(u) = u*sigmoid(2*sqrt(2/pi)*(u+0.044715u^3)), u = acc*r12:  h = acc / (sigma'*(1+exp2(acc*(GA+GB*acc^2))))")
    a, G = ACC[0], ACC[1]
    for p in range(16): A(f"v_mul_f32 v{G+p}, v{a+p}, v{a+p}")
    for p in range(16): A(f"v_fma_f32 v{G+p}, v{G+p}, v{vGB}, v{vGA}")
    for p in range(16): A(f"v_mul_f32 v{G+p}, v{G+p}, v{a+p}")
    for p in range(16): A(f"v_exp_f32 v{G+p}, v{G+p}")
    for p in range(16): A(f"v_fma_f32 v{G+p}, v{G+p}, v{vGS}, v{vGS}")
    for p in range(16): A(f"v_rcp_f32 v{G+p}, v{G+p}")
    for p in range(16): A(f"v_mul_f32 v{G+p}, v{G+p}, v{a+p}")
    for p in range(8): A(f"v_cvt_pk_bf16_f32 v{8+p}, v{G+2*p}, v{G+2*p+1}")
    A(f"buffer_store_dwordx4 {vr(8,4)}, v{vSO}, {sr(SWS,4)}, s{sST} offen sc1", f"buffer_store_dwordx4 {vr(12,4)}, v{vSO}, {sr(SWS,4)}, s{sST} offen offset:1024 sc1",
      f"s_add_u32 s{sST}, s{sST}, 2048", f"s_add_u32 s{sIT}, s{sIT}, 1", f"s_cmp_lt_u32 s{sIT}, 2", f"s_cbranch_scc1 {name}_chain")
    A(f"s_cmp_eq_u32 s{sROLE}, 1", f"s_cbranch_scc1 {name}_g1")
    A.label(f"{name}_attn")
    stamp(A, 6, diag)
    t = TA
    A(f"v_mov_b32 v{vIDX}, 0xdddddddd")
    A.c("score row r holds key r with bits 2 and 3 swapped, which lines the probabilities up with the stored V fragments")
    A(f"v_and_b32 v{vK0}, 0x33, v{vL}", f"v_and_b32 v{t}, 4, v{vL}", f"v_lshl_or_b32 v{vK0}, v{t}, 1, v{vK0}", f"v_and_b32 v{t}, 8, v{vL}",
      f"v_lshrrev_b32 v{t}, 1, v{t}", f"v_or_b32 v{vK0}, v{t}, v{vK0}", f"v_lshlrev_b32 v{vK0}, 4, v{vK0}",
      f"s_lshl_b32 s{sT0}, s3, 11", f"s_add_u32 s{sT0}, s{sT0}, {L_Q}", f"v_add_u32 v{t+4}, s{sT0}, v{vSO}")
    attn_init(A)
    A("s_barrier")
    stamp(A, 7, diag)
    A(f"ds_read_b128 {vr(QA,4)}, v{t+4}", f"ds_read_b128 {vr(QB,4)}, v{t+4} offset:1024")
    attn_loop(A, f"{name}_loop", True)
    stamp(A, 11, diag)
    A.c("softmax guard: the unshifted sums are exact while the row sum stays in [2^-80, 2^80] and O is finite; otherwise redo with the true row max")
    A(f"v_mov_b32 v{t}, 0")
    for O in (OA, OB):
        for r in range(8):
            A(f"v_fma_f32 v{t}, v{O+r}, 0, v{t}")
    A(f"v_min_f32 v{t+1}, v{OA+8}, v{OB+8}", f"v_max_f32 v{t+2}, v{OA+8}, v{OB+8}",
      f"v_add_f32 v{t+1}, v{t+1}, v{t}", f"v_add_f32 v{t+2}, v{t+2}, v{t}",
      f"v_cmp_u_f32 s[4:5], v{OA+8}, v{OB+8}",
      f"v_cmp_nle_f32 vcc, {fl(2.0**-80)}, v{t+1}", f"s_or_b64 s[4:5], s[4:5], vcc",
      f"v_cmp_nge_f32 vcc, {fl(2.0**80)}, v{t+2}", f"s_or_b64 s[4:5], s[4:5], vcc",
      f"s_cmp_lg_u64 s[4:5], 0", f"s_cbranch_scc1 {name}_slow")
    A.label(f"{name}_norm")
    A(f"v_rcp_f32 v{t}, v{OA+8}", f"v_rcp_f32 v{t+1}, v{OB+8}",
      f"s_lshl_b32 s{sT2}, s{sQB}, 2", f"s_add_u32 s{sT2}, s{sT2}, s3", f"s_lshl_b32 s{sT0}, s{sT2}, 6",
      f"s_add_u32 s{sT0}, s{sT0}, s{sH}", f"s_lshl_b32 s{sT0}, s{sT0}, 10", f"s_add_u32 s{sT0}, s{sT0}, {WS_O}", f"s_add_u32 s{sT1}, s{sT0}, 32768")
    for j, O in enumerate((OA, OB)):
        for r in range(8):
            A(f"v_mul_f32 v{O+r}, v{O+r}, v{t+j}")
        for p in range(4):
            A(f"v_cvt_pk_bf16_f32 v{O+p}, v{O+2*p}, v{O+2*p+1}")
        A(f"buffer_store_dwordx4 {vr(O,4)}, v{vSO}, {sr(SWS,4)}, s{sT0 if j == 0 else sT1} offen sc1")
    vDW3 = 4
    dma128_off(A, vDW3, t)
    A(f"s_add_u32 s{sT2}, s{sT2}, {C_O}", "s_waitcnt vmcnt(0)")
    signal(A, sT2, t)
    A("s_barrier")
    stamp(A, 12, diag)
    p3_common_dma_wo(A, vDW3)
    A("s_barrier")
    A("s_cmp_lg_u32 s3, 0", f"s_cbranch_scc1 {name}_a6", f"s_add_u32 s{sT0}, s{sH}, {C_O}", f"s_lshl_b32 s{sT0}, s{sT0}, 7", f"s_add_u32 s{sT0}, s{sT0}, {WS_CNT}",
      f"v_mov_b32 v{t}, s{sT0}")
    poll(A, name, t, t+1, 32, 1)
    A.label(f"{name}_a6")
    A("s_barrier")
    p3_common_dma_o(A)
    for c in range(4):
        A(f"s_waitcnt vmcnt({(3-c)*2})", "s_barrier")
    A(f"s_branch {name}_fin")
    A.label(f"{name}_slow")
    A.c("fallback: true maximum of every row, then the same loop with the maximum subtracted through the MFMA C operand")
    A(f"s_mov_b32 s{sIT}, 0", f"v_mov_b32 v{vKA}, v{vK0}", f"v_mov_b32 v{t+4}, 0xff800000", f"v_mov_b32 v{t+5}, 0xff800000")
    A.label(f"{name}_mx")
    A(f"ds_read_b128 {vr(KB,4)}, v{vKA}", "s_waitcnt lgkmcnt(0)", mfma(SA, KB, QA, "0"), mfma(SB_, KB, QB, "0"), "s_nop 7", "s_nop 3")
    for j, S in enumerate((SA, SB_)):
        for r in range(8):
            A(f"v_max3_f32 v{t+4+j}, v{S+2*r}, v{S+2*r+1}, v{t+4+j}")
    A(f"v_add_u32 v{vKA}, 1024, v{vKA}", f"s_add_u32 s{sIT}, s{sIT}, 1", f"s_cmp_lt_u32 s{sIT}, 64", f"s_cbranch_scc1 {name}_mx")
    A(f"v_mov_b32 v{t+6}, v{t+4}", f"v_mov_b32 v{t+7}, v{t+5}", "s_nop 1", f"v_permlane32_swap_b32 v{t+4}, v{t+6}", f"v_permlane32_swap_b32 v{t+5}, v{t+7}", "s_nop 1",
      f"v_max_f32 v{t+4}, v{t+4}, v{t+6}", f"v_max_f32 v{t+5}, v{t+5}, v{t+7}")
    for r in range(16):
        A(f"v_sub_f32 v{CA+r}, 0, v{t+4}", f"v_sub_f32 v{CB+r}, 0, v{t+5}")
    attn_init(A)
    attn_loop(A, f"{name}_loop2", False)
    A(f"s_branch {name}_norm")
    GA, HB, WF = 16, 80, 104
    vDW2, vTR, vB2, XR, vXO = 120, 122, 128, 136, 126
    t = 144
    A.label(f"{name}_g0")
    A("s_waitcnt vmcnt(0)", f"s_branch {name}_g2")
    A.label(f"{name}_g1")
    A("s_waitcnt vmcnt(2)")
    A.label(f"{name}_g2")
    A("s_setprio 0", "s_barrier")
    stamp(A, 7, diag)
    for j in range(2, 16): kv(j)
    dma128_off(A, vDW2, t)
    A(f"s_lshr_b32 s{sT2}, s{sRBLK}, 1", f"s_lshl_b32 s{sM0}, s{sRBLK}, 12")
    tr128_addr(A, vTR, t, sT2, f"s{sM0}")
    A(f"v_add_u32 v{vTR}, {L_W2A}, v{vTR}", f"v_xor_b32 v{vTR+1}, 64, v{vTR}", f"s_lshl_b32 s{sMW}, s{sRBLK}, 11",
      f"s_sub_u32 s{sT0}, {L_Q - L_W2A}, s{sMW}", f"v_add_u32 v{vTR+2}, s{sT0}, v{vTR}", f"v_xor_b32 v{vTR+3}, 64, v{vTR+2}")
    A(f"s_lshl_b32 s{sHO}, s{sH}, 1", f"s_and_b32 s{sT0}, s{sRBLK}, 1", f"s_add_u32 s{sT1}, s{sHO}, s{sT0}", f"s_xor_b32 s{sPH}, s{sT1}, 1",
      f"s_mul_i32 s{sHO}, s{sT1}, {112*1024}", f"s_mul_i32 s{sPH}, s{sPH}, {112*1024}", f"s_mul_i32 s{sT0}, s{sRBLK}, {28*1024}", f"s_add_u32 s{sT0}, s{sT0}, {WS_H}",
      f"s_add_u32 s{sHO}, s{sHO}, s{sT0}", f"s_add_u32 s{sPH}, s{sPH}, s{sT0}",
      f"s_mul_i32 s{sWO}, s{sRBLK}, {28*16384}", f"s_lshl_b32 s{sT0}, s{sQB}, 7", f"s_add_u32 s{sWO}, s{sWO}, s{sT0}")
    A("s_waitcnt vmcnt(24)", "s_barrier")
    A(f"s_cmp_lg_u32 s3, 4", f"s_cbranch_scc1 {name}_g3", f"s_cmp_eq_u32 s{sHASF}, 0", f"s_cbranch_scc1 {name}_g3", f"s_add_u32 s{sT2}, s{sRB}, {C_H}")
    signal(A, sT2, t)
    A.label(f"{name}_g3")
    A("s_waitcnt vmcnt(0)", "s_barrier")
    A(f"s_lshr_b32 s{sT0}, s{sH}, 1", f"s_add_u32 s{sT0}, s{sT0}, {C_H}", f"s_lshl_b32 s{sT0}, s{sT0}, 7", f"s_add_u32 s{sT0}, s{sT0}, {WS_CNT}", f"v_mov_b32 v{t}, s{sT0}")
    poll(A, name, t, t+1, 14, 1)
    stamp(A, 8, diag)
    vm = VM(A)
    def ld(i):
        hb = HB + (i % 3) * 8
        m0 = f"s_add_u32 m0, s{sM0}, {L_W2A + (i%3)*2048}" if i % 3 < 2 else f"s_add_u32 m0, s{sMW}, {L_Q}"
        vm.op(i, m0, f"s_add_u32 s{sT0}, s{sWO}, {i*16384}",
              f"buffer_load_dwordx4 v{vDW2}, {sr(SW2,4)}, s{sT0} offen lds", f"buffer_load_dwordx4 v{vDW2+1}, {sr(SW2,4)}, s{sT0} offen offset:1024 lds",
              f"s_add_u32 s{sT0}, s{sHO}, {i*1024}", f"buffer_load_dwordx4 {vr(hb,4)}, v{vSO}, {sr(SWS,4)}, s{sT0} offen sc1",
              f"s_add_u32 s{sT0}, s{sPH}, {i*1024}", f"buffer_load_dwordx4 {vr(hb+4,4)}, v{vSO}, {sr(SWS,4)}, s{sT0} offen sc1")
    def trw(i):
        for nb in range(2):
            for u in range(2):
                reg, off = (vTR+nb, (i%3)*2048) if i % 3 < 2 else (vTR+2+nb, 0)
                A(f"ds_read_b64_tr_b16 {vr(WF+8*(i%2)+4*nb+2*u,2)}, v{reg} offset:{off + u*1024}")
    ld(0); ld(1); ld(2)
    vm.wait(0); trw(0)
    for i in range(28):
        hb = HB + (i % 3) * 8
        if i + 1 < 28:
            vm.wait(i + 1); trw(i + 1); A("s_waitcnt lgkmcnt(4)")
        else:
            A("s_waitcnt lgkmcnt(0)")
        for a in range(4):
            A(mfma(GA+16*a, WF+8*(i%2)+4*(a>>1), hb+4*(a&1), "0" if i == 0 else None))
        if i + 3 < 28: ld(i + 3)
    stamp(A, 9, diag)
    A.c("bias, residual rows of the own 32x32 sub-tile (nb = w>>1, tb = w&1)")
    A(f"s_lshl_b32 s{sT0}, s{sQB}, 7", f"s_lshr_b32 s{sT2}, s{sRBLK}, 1", f"s_lshl_b32 s{sT1}, s{sT2}, 6", f"s_add_u32 s{sT0}, s{sT0}, s{sT1}",
      f"v_lshrrev_b32 v{t+1}, 5, v{vL}", f"v_lshlrev_b32 v{t+1}, 4, v{t+1}", f"v_add_u32 v{t}, s{sT0}, v{t+1}",
      f"global_load_dwordx4 {vr(vB2,4)}, v{t}, s[{PB2}:{PB2+1}]", f"global_load_dwordx4 {vr(vB2+4,4)}, v{t}, s[{PB2}:{PB2+1}] offset:32",
      f"v_and_b32 v{t}, 31, v{vL}", f"v_lshl_add_u32 v{vXO}, v{t}, 10, v{t+1}",
      f"s_lshl_b32 s{sST}, s{sH}, 1", f"s_and_b32 s{sT1}, s{sRBLK}, 1", f"s_add_u32 s{sST}, s{sST}, s{sT1}", f"s_lshl_b32 s{sST}, s{sST}, 15", f"s_add_u32 s{sST}, s{sST}, s{sT0}",
      f"buffer_load_dwordx4 {vr(XR,4)}, v{vXO}, {sr(SX,4)}, s{sST} offen", f"buffer_load_dwordx4 {vr(XR+4,4)}, v{vXO}, {sr(SX,4)}, s{sST} offen offset:32")
    A.c("touch the Wo slice so that it is near when it is needed")
    A(f"s_lshl_b32 s{sT0}, s{sRBLK}, 17", f"s_lshl_b32 s{sT1}, s{sQB}, 7", f"s_add_u32 s{sT0}, s{sT0}, s{sT1}", f"v_lshlrev_b32 v{t}, 10, v{vL}",
      f"buffer_load_dword v{t+2}, v{t}, {sr(SWO,4)}, s{sT0} offen", f"s_add_u32 s{sT0}, s{sT0}, 65536", f"buffer_load_dword v{t+3}, v{t}, {sr(SWO,4)}, s{sT0} offen")
    tr128_addr(A, vTR, t+4, sT2, L_WO)
    A(f"s_mul_i32 s{sT0}, s{sRBLK}, 12288", f"s_add_u32 s{sT0}, s{sT0}, {L_O}", f"v_add_u32 v{vTR+2}, s{sT0}, v{vSO}",
      f"s_and_b32 s{sT0}, s{sRBLK}, 1", f"s_lshl_b32 s{sT0}, s{sT0}, 15", f"s_add_u32 s{sT0}, s{sT0}, {L_O}", f"v_add_u32 v{vTR+1}, s{sT0}, v{vSO}",
      "s_waitcnt vmcnt(0)", "s_barrier")
    stamp(A, 12, diag)
    p3_common_dma_wo(A, vDW2)
    A.c("reduce the four K-quarters of FFN2: slot r goes to wave w^r")
    for r in range(1, 4):
        for q in range(4):
            A(f"ds_write_b128 v{vTR+2}, {vr(GA+16*r+4*q,4)} offset:{(r-1)*4096 + q*1024}")
    A("s_waitcnt lgkmcnt(0)", "s_barrier")
    for r in range(1, 4):
        A(f"s_xor_b32 s{sT0}, s{sRBLK}, {r}", f"s_mul_i32 s{sT0}, s{sT0}, 12288", f"s_add_u32 s{sT0}, s{sT0}, {L_O + (r-1)*4096}", f"v_add_u32 v{t}, s{sT0}, v{vSO}")
        for q in range(4):
            A(f"ds_read_b128 {vr(GA+16*r+4*q,4)}, v{t} offset:{q*1024}")
    E = 80
    for p in range(8):
        A(f"v_lshlrev_b32 v{E+2*p}, 16, v{vB2+p}", f"v_and_b32 v{E+2*p+1}, 0xffff0000, v{vB2+p}")
    for p in range(8): A(f"v_pk_add_f32 {vr(GA+2*p,2)}, {vr(GA+2*p,2)}, {vr(E+2*p,2)}")
    A("s_waitcnt lgkmcnt(0)", "s_barrier")
    p3_common_dma_o(A)
    for r in range(1, 4):
        for p in range(8): A(f"v_pk_add_f32 {vr(GA+2*p,2)}, {vr(GA+2*p,2)}, {vr(GA+16*r+2*p,2)}")
    A.c("g = silu(v)")
    for p in range(16): A(f"v_mul_f32 v{E+p}, {fl(-math.log2(math.e))}, v{GA+p}")
    for p in range(16): A(f"v_exp_f32 v{E+p}, v{E+p}")
    for p in range(16): A(f"v_add_f32 v{E+p}, 1.0, v{E+p}")
    for p in range(16): A(f"v_rcp_f32 v{E+p}, v{E+p}")
    for p in range(8): A(f"v_pk_mul_f32 {vr(GA+2*p,2)}, {vr(GA+2*p,2)}, {vr(E+2*p,2)}")
    for p in range(8):
        A(f"v_lshlrev_b32 v{E+2*p}, 16, v{XR+p}", f"v_and_b32 v{E+2*p+1}, 0xffff0000, v{XR+p}")
    AC3, WF3, OF3 = 32, 48, 64
    def reads(s):
        b = s % 4
        A(f"ds_read_b128 {vr(OF3+4*b,4)}, v{vTR+1} offset:{s*1024}")
        for u in range(2):
            A(f"ds_read_b64_tr_b16 {vr(WF3+4*b+2*u,2)}, v{vTR} offset:{s*2048 + u*1024}")
    for c in range(4):
        A(f"s_waitcnt vmcnt({(3-c)*2})", "s_barrier")
        if c == 0: stamp(A, 10, diag)
        for s in range(8*c, 8*c + 3): reads(s)
        for s in range(8*c, 8*c + 8):
            if s + 3 < 8*c + 8: reads(s + 3)
            A(f"s_waitcnt lgkmcnt({3*min(3, 8*c+7-s)})", mfma(AC3, WF3+4*(s%4), OF3+4*(s%4), "0" if s == 0 else None))
    A("s_nop 7", "s_nop 3")
    for p in range(8):
        A(f"v_pk_fma_f32 {vr(AC3+2*p,2)}, {vr(AC3+2*p,2)}, {vr(GA+2*p,2)}, {vr(E+2*p,2)}")
    for p in range(8):
        A(f"v_cvt_pk_bf16_f32 v{AC3+p}, v{AC3+2*p}, v{AC3+2*p+1}")
    A(f"buffer_store_dwordx4 {vr(AC3,4)}, v{vXO}, {sr(SOUT,4)}, s{sST} offen", f"buffer_store_dwordx4 {vr(AC3+4,4)}, v{vXO}, {sr(SOUT,4)}, s{sST} offen offset:32")
    stamp(A, 11, diag)
    A.label(f"{name}_fin")
    stamp_store(A, diag, 0, SWS)
    if "dbg" in OPT:
        A("s_cmp_lg_u32 s2, 9", f"s_cbranch_scc1 {name}_end", "s_cmp_lg_u32 s3, 4", f"s_cbranch_scc1 {name}_end", "v_mov_b32 v3, 0")
        for i in range(1, 14):
            A(f"s_sub_u32 s96, s{STAMP0+2*i}, s{STAMP0}", "v_mov_b32 v2, s96", "s_nop 0", f"global_store_dword v3, v2, s[{PDBG}:{PDBG+1}] offset:{4*i}", "s_nop 0")
        A(f"s_sub_u32 s96, s{STAMP0+30}, s{STAMP0+28}", "v_mov_b32 v2, s96", "s_nop 0", f"global_store_dword v3, v2, s[{PDBG}:{PDBG+1}] offset:56", "s_waitcnt vmcnt(0)")
    A.label(f"{name}_end")
    A("s_endpgm")
    return A.text(), descriptor(name, 256), (256, 512, LDS_BYTES)

def build(path, diag=False):
    name = NAME + "_kernel"
    code, d, (g, b, lds) = gen(name, diag)
    s = open("cdna_kernels/" + NAME + ".s.ref").read().split("; Override launch")[0]
    s += f"; @launch grid=({g},1,1) block=({b},1,1) lds={lds}\n"
    s += '.amdgcn_target "amdgcn-amd-amdhsa--gfx950"\n.text\n' + code + '\n.section .rodata,"a"\n' + d + "\n"
    open(path, "w").write(s)

if __name__ == "__main__":
    import sys
    if len(sys.argv) > 2:
        OPT = set(sys.argv[2].split(","))
        build(sys.argv[1], diag="nodiag" not in OPT)
    else:
        build("mega.s"); build("megad.s", diag=True)
```
